```python
import torch

def _softmax(x, axis=-1):
    return torch.softmax(x, dim=axis)
def _gelu(x):
    return torch.nn.functional.gelu(x, approximate="tanh")
def _silu(x):
    return torch.nn.functional.silu(x)
def _sigmoid(x):
    return torch.sigmoid(x)
def _layernorm(x, axis=-1, eps=1e-5):
    m = x.mean(dim=axis, keepdim=True)
    v = x.var(dim=axis, keepdim=True, unbiased=False)
    return (x - m) / torch.sqrt(v + eps)
def _scatter_add(tgt, idx, src, axis=0):
    return tgt.clone().index_add_(axis, idx, src)
def _segment_sum(src, seg, n):
    out = torch.zeros((n,) + src.shape[1:], dtype=src.dtype)
    return out.index_add_(0, seg, src)
def _pad(x, pw):
    flat = tuple(v for pair in reversed(pw) for v in pair)
    return torch.nn.functional.pad(x, flat)

kernel_name = 'sequential_preLN__sliding_block__glu_gated_glu__prompt'

def setup_inputs():

    _w = (lambda a: (lambda t: t.to(torch.bfloat16) if t.is_floating_point() else t)(torch.as_tensor(a)))
    def _A_setup():
        B, S, D = 1, 2048, 640
        return {
            "x": _w((lambda *s: torch.randn(*s, dtype=torch.bfloat16) * 0.05)(B, S, D)),
            "wqkv": _w((lambda *s: torch.randn(*s, dtype=torch.bfloat16) * 0.05)(D, 3 * D)),
            "wo": _w((lambda *s: torch.randn(*s, dtype=torch.bfloat16) * 0.05)(D, D)),
        }
    _A_in = _A_setup()

    def _B_setup():
        B, S, D, F = 1, 2048, 640, 1728
        return {
            "x": _w((lambda *s: torch.randn(*s, dtype=torch.bfloat16) * 0.05)(B, S, D)),
            "w_gate": _w((lambda *s: torch.randn(*s, dtype=torch.bfloat16) * 0.05)(D, F)),
            "w_up": _w((lambda *s: torch.randn(*s, dtype=torch.bfloat16) * 0.05)(D, F)),
            "w_down": _w((lambda *s: torch.randn(*s, dtype=torch.bfloat16) * 0.05)(F, D)),
        }
    _B_in = _B_setup()

    return {
        "A_x": _A_in["x"],
        "A_wqkv": _A_in["wqkv"],
        "A_wo": _A_in["wo"],
        "B_x": _B_in["x"],
        "B_w_gate": _B_in["w_gate"],
        "B_w_up": _B_in["w_up"],
        "B_w_down": _B_in["w_down"],
    }

def reference(A_x, A_wqkv, A_wo, B_x, B_w_gate, B_w_up, B_w_down):
    def _A_ref(x, wqkv, wo):
        B, S, D = x.shape
        H = 32; Dh = D // H; W = 256
        qkv = (lambda x, *d: x.permute(*d))((x @ wqkv).reshape(B, S, 3, H, Dh), 2, 0, 3, 1, 4)
        q, k, v = qkv[0], qkv[1], qkv[2]
        scores = torch.einsum("bhqd,bhkd->bhqk", q, k) * (Dh ** -0.5)
        idx = torch.arange(S)
        mask = (idx[:, None] - idx[None, :] >= 0) & (idx[:, None] - idx[None, :] < W)
        scores = torch.where(mask[None, None], scores, -1e9)
        p = _softmax(scores, axis=-1)
        o = torch.einsum("bhqk,bhkd->bhqd", p, v)
        return (lambda x, *d: x.permute(*d))(o, 0, 2, 1, 3).reshape(B, S, D) @ wo

    def _B_ref(x, w_gate, w_up, w_down):
        g = torch.einsum("bsd,df->bsf", x, w_gate)
        u = torch.einsum("bsd,df->bsf", x, w_up)
        h = _sigmoid(g) * u
        return torch.einsum("bsf,fd->bsd", h, w_down)

    x = A_x
    h = x + _A_ref(_layernorm(x, axis=-1), A_wqkv, A_wo)
    h2 = h + _B_ref(_layernorm(h, axis=-1), B_w_gate, B_w_up, B_w_down)
    return h2
```

```python
from emit import *

MB = 1 << 20
OFF_U = 0
OFF_O = 8 * MB
OFF_H = 11 * MB
OFF_ST = 14 * MB
OFF_HH = 16 * MB
OFF_WO = 24 * MB
OFF_WD = 25 * MB
OFF_WGU = 28 * MB
WS_END = OFF_WGU + 108 * 41 * 1024
OFF_STAMP = 40 * MB
OOB = 0x7f000000
QSCALE = (20 ** -0.5) * 1.4426950408889634
EPS = 1e-5

import struct
def f2u(x): return struct.unpack("<I", struct.pack("<f", x))[0]
def hx(x): return f"0x{x & 0xffffffff:x}"

def kernel_begin(e, name):
    e.raw(f".globl {name}\n.p2align 8\n.type {name},@function\n{name}:")
    e.reset()

def kd(name, vgpr, agpr=0, sgpr=102):
    acc = (vgpr + 3) // 4 * 4
    nfv = acc + agpr if agpr else vgpr
    return f""".p2align 6
.amdhsa_kernel {name}
  .amdhsa_next_free_vgpr {nfv}
  .amdhsa_next_free_sgpr {sgpr}
  .amdhsa_accum_offset {acc}
  .amdhsa_group_segment_fixed_size 0
  .amdhsa_kernarg_size 80
  .amdhsa_user_sgpr_count 2
  .amdhsa_user_sgpr_kernarg_segment_ptr 1
  .amdhsa_system_sgpr_workgroup_id_x 1
.end_amdhsa_kernel
"""

def srd(e, d, base, nbytes):
    e.I(f"s_mov_b32 s{d}, s{base}\ns_mov_b32 s{d+1}, s{base+1}\ns_mov_b32 s{d+2}, {hx(nbytes)}\ns_mov_b32 s{d+3}, 0x20000")

def code_touch(e, name, vtmp, vdst, nthreads, spair=98):
    e.I(f"s_getpc_b64 s[{spair}:{spair+1}]")
    e.label(f"L{name}_pc")
    e.I(f"v_lshlrev_b32 v{vtmp}, 7, v0")
    e.I(f"v_min_u32 v{vtmp}, L{name}_endcode-L{name}_pc-4, v{vtmp}")
    e.I(f"global_load_dword v{vdst}, v{vtmp}, s[{spair}:{spair+1}]")

class Stamper:
    def __init__(self, e, on, kidx, sbase=80):
        self.e, self.on, self.kidx, self.sb, self.n = e, on, kidx, sbase, 0
    def stamp(self, idx=None):
        if not self.on: return
        k = self.n if idx is None else idx
        self.n = k + 1
        assert k < 8
        self.e.raw(f"  {'s_memtime' if self.on == 2 else 's_memrealtime'} s[{self.sb+2*k}:{self.sb+2*k+1}]")
        self.e.st.lg.append((set(), None, True, set()))
        self.e.wait_lg(0)
    def dump(self, swave, wsbase, v0=2):
        if not self.on: return
        e = self.e
        e.I(f"s_lshl_b32 s96, s2, 4\ns_add_u32 s96, s96, s{swave}\ns_lshl_b32 s96, s96, 5\ns_add_u32 s96, s96, {hx(OFF_STAMP + self.kidx*131072)}")
        v0 = (v0 + 1) // 2 * 2
        for k in range(8): e.I(f"v_mov_b32 v{v0+k}, s{self.sb+2*k}")
        e.I(f"v_mov_b32 v{v0+8}, s96")
        e.I("s_mov_b64 exec, 1")
        e.I(f"global_store_dwordx4 v{v0+8}, v[{v0}:{v0+3}], s[{wsbase}:{wsbase+1}]")
        e.I(f"global_store_dwordx4 v{v0+8}, v[{v0+4}:{v0+7}], s[{wsbase}:{wsbase+1}] offset:16")
```

```python
import re, copy

REG_RE = re.compile(r'\b([vas])\[(\d+):(\d+)\]|\b([vas])(\d+)\b|\b(vcc|exec|m0|scc)\b')

def regs_of(tok):
    out = []
    for m in REG_RE.finditer(tok):
        if m.group(1):
            out += [f"{m.group(1)}{i}" for i in range(int(m.group(2)), int(m.group(3)) + 1)]
        elif m.group(4):
            out.append(f"{m.group(4)}{m.group(5)}")
        else:
            out.append(m.group(6))
    return out

def split_ops(s):
    ops, depth, cur = [], 0, ""
    for ch in s:
        if ch in "[(": depth += 1
        if ch in "])": depth -= 1
        if ch == "," and depth == 0:
            ops.append(cur.strip()); cur = ""
        else:
            cur += ch
    if cur.strip(): ops.append(cur.strip())
    return ops

TRANS = ("v_exp_f32", "v_log_f32", "v_rcp_f32", "v_rsq_f32", "v_sqrt_f32", "v_sin_f32", "v_cos_f32")

class Inst:
    __slots__ = ("text", "op", "cls", "rd", "wr", "passes", "srcC", "srcAB", "dpp", "lds_dma", "wide_store", "sdata")

def classify(text):
    t = text.strip()
    sp = t.split(None, 1)
    op = sp[0]; rest = sp[1] if len(sp) > 1 else ""
    ops = split_ops(rest)
    i = Inst(); i.text = text; i.op = op; i.rd = set(); i.wr = set(); i.passes = 0; i.srcC = set(); i.srcAB = set()
    i.dpp = ("_dpp" in op) or (" row_" in t) or ("quad_perm" in t); i.lds_dma = False; i.wide_store = False; i.sdata = set()
    R = lambda k: set(regs_of(ops[k])) if k < len(ops) else set()
    allr = lambda a: set().union(*[set(regs_of(x)) for x in ops[a:]]) if len(ops) > a else set()
    if op.startswith("v_mfma"):
        i.cls = "mfma"; i.wr = R(0); i.srcAB = R(1) | R(2); i.srcC = R(3); i.rd = i.srcAB | i.srcC
        i.passes = 8 if "32x32" in op else 4
    elif op.startswith("v_cmp"):
        i.cls = "valu"; i.wr = R(0); i.rd = allr(1)
    elif op.startswith("v_readfirstlane") or op.startswith("v_readlane"):
        i.cls = "valu"; i.wr = R(0); i.rd = allr(1)
    elif op.startswith("v_permlane"):
        i.cls = "valu"; i.wr = R(0) | R(1); i.rd = R(0) | R(1)
    elif op.startswith("v_"):
        i.cls = "valu"; i.wr = R(0); i.rd = allr(1)
        if op.startswith(("v_fmac", "v_dot2c", "v_mac")) or i.dpp: i.rd |= R(0)
        if op.startswith(("v_add_co", "v_sub_co", "v_addc_co", "v_subb_co")):
            i.wr |= R(1); i.rd = allr(2)
    elif op.startswith(("buffer_load", "global_load")):
        i.cls = "vmem"
        if re.search(r'\blds\b', t) or "load_lds" in op:
            i.lds_dma = True; i.rd = allr(0) | {"m0"}
        else:
            i.wr = R(0); i.rd = allr(1)
    elif op.startswith(("buffer_store", "global_store", "global_atomic", "buffer_atomic")):
        i.cls = "vmem"; i.rd = allr(0)
        if op.endswith(("x4", "x3")):
            i.wide_store = True
            i.sdata = R(0) if op.startswith("buffer") else R(1)
    elif op.startswith(("buffer_wbl2", "buffer_inv")):
        i.cls = "vmem"
    elif op.startswith("ds_read") or op.startswith("ds_bpermute") or op.startswith("ds_swizzle"):
        i.cls = "ds"; i.wr = R(0); i.rd = allr(1)
    elif op.startswith("ds_"):
        i.cls = "ds"; i.rd = allr(0)
    elif op.startswith(("s_load", "s_buffer_load", "s_memtime", "s_memrealtime")):
        i.cls = "smem"; i.wr = R(0); i.rd = allr(1)
    elif op.startswith(("s_cmp", "s_cbranch", "s_branch", "s_barrier", "s_waitcnt", "s_nop", "s_endpgm", "s_setprio", "s_sleep", "s_setpc")):
        i.cls = "sctl"; i.rd = allr(0) if op.startswith(("s_cmp", "s_setpc")) else set()
    elif op.startswith("s_"):
        i.cls = "salu"; i.wr = R(0); i.rd = allr(1)
        if "saveexec" in op: i.wr |= {"exec"}
    else:
        raise Exception("unknown op " + text)
    return i

class State:
    def __init__(self):
        self.hist = []
        self.vm = []
        self.lg = []

class Emitter:
    def __init__(self):
        self.lines = []; self.st = State(); self.nnop = 0; self.ninst = 0
    def raw(self, s): self.lines.append(s)
    def comment(self, s): self.lines.append("  ; " + s)
    def label(self, n): self.lines.append(n + ":")
    def reset(self): self.st = State()
    def save(self): return copy.deepcopy(self.st)
    def restore(self, s): self.st = copy.deepcopy(s)
    def merge(self, other):
        self.st.hist = self.st.hist + copy.deepcopy(other.hist)
        assert len(self.st.vm) == len(other.vm) and len(self.st.lg) == len(other.lg), "merge with different outstanding counts"
    def _age(self, n):
        self.st.hist = [(i, a + n) for (i, a) in self.st.hist if a + n < 24]
    def _put(self, text, n=1):
        self.lines.append("  " + text); self._age(n); self.ninst += 1
    def wait_vm(self, n):
        n = max(0, n)
        if len(self.st.vm) > n:
            assert n <= 63
            self._put(f"s_waitcnt vmcnt({n})"); self.st.vm = self.st.vm[len(self.st.vm) - n:] if n else []
    def wait_lg(self, n):
        if len(self.st.lg) > n:
            if any(x[2] for x in self.st.lg): n = 0
            n = min(n, 15)
            if len(self.st.lg) > n:
                self._put(f"s_waitcnt lgkmcnt({n})"); self.st.lg = self.st.lg[len(self.st.lg) - n:] if n else []
    def wait_tag(self, tag):
        idx = [k for k, x in enumerate(self.st.vm) if x[1] == tag]
        if idx: self.wait_vm(len(self.st.vm) - 1 - max(idx))
        idx = [k for k, x in enumerate(self.st.lg) if x[1] == tag]
        if idx: self.wait_lg(len(self.st.lg) - 1 - max(idx))
    def _auto_wait(self, i):
        touch = i.rd | i.wr
        idx = [k for k, x in enumerate(self.st.vm) if x[0] & touch]
        if idx: self.wait_vm(len(self.st.vm) - 1 - max(idx))
        idx = [k for k, x in enumerate(self.st.lg) if x[0] & touch]
        if idx: self.wait_lg(len(self.st.lg) - 1 - max(idx))
        if i.cls in ("vmem", "ds") and i.wr:
            idx = [k for k, x in enumerate(self.st.lg) if len(x) > 3 and x[3] & i.wr and i.cls == "vmem"]
            if idx: self.wait_lg(len(self.st.lg) - 1 - max(idx))
            idx = [k for k, x in enumerate(self.st.vm) if x[2] & i.wr and i.cls == "ds"]
            if idx: self.wait_vm(len(self.st.vm) - 1 - max(idx))
    def _need(self, p, c):
        n = 0
        vw = {r for r in p.wr if r[0] in "va" and r != "vcc"}
        sw = {r for r in p.wr if r[0] == "s" or r == "vcc"}
        if p.cls == "valu":
            isdot = p.op.startswith("v_dot")
            if c.cls == "mfma" and vw & c.rd: n = max(n, 3 if isdot else 2)
            if p.op.startswith(TRANS) and c.cls in ("valu",) and not c.op.startswith(TRANS) and vw & c.rd: n = max(n, 1)
            if p.op.startswith(TRANS) and c.cls in ("vmem", "ds") and vw & c.rd: n = max(n, 1)
            if c.cls == "vmem" and sw & c.rd: n = max(n, 5)
            if c.cls == "valu" and sw & c.rd: n = max(n, 4 if c.op.startswith(("v_readlane", "v_writelane")) else 2)
            if c.cls == "valu" and "vcc" in sw and c.op.startswith(("v_cndmask", "v_addc", "v_subb")) and "vcc" in c.rd: n = max(n, 2)
            if c.cls in ("salu", "sctl") and sw & c.rd: n = max(n, 1)
            if c.op.startswith(("v_readfirstlane", "v_readlane")) and vw & c.rd: n = max(n, 1)
            if c.op.startswith("v_permlane") and vw & c.rd: n = max(n, 2)
            if c.dpp and vw & c.rd: n = max(n, 2)
            if isdot and (vw & (c.rd | c.wr)):
                same = (c.op == p.op)
                if not same: n = max(n, 3)
                else:
                    srcs = c.rd - c.wr
                    if vw & srcs: n = max(n, 3)
            if "exec" in p.wr and c.cls == "mfma": n = max(n, 4)
            if "exec" in p.wr and c.dpp: n = max(n, 5)
            if c.op.startswith("s_cbranch_vcc") and "vcc" in sw: n = max(n, 5)
        if p.cls == "mfma":
            big = 12 if p.passes == 8 else 8
            if c.cls == "mfma":
                if p.wr & c.srcAB: n = max(n, big)
                if p.wr & c.srcC:
                    if not (p.wr == c.srcC and p.passes == c.passes): n = max(n, 10 if p.passes == 8 else 6)
                elif p.wr & c.wr:
                    n = max(n, 10 if p.passes == 8 else 6)
            elif c.cls in ("valu", "vmem", "ds"):
                if p.wr & (c.rd | c.wr): n = max(n, big)
                if c.cls == "valu" and p.srcC & c.wr: n = max(n, 7 if p.passes == 8 else 3)
        if p.cls == "vmem" and p.wide_store and (p.sdata & c.wr): n = max(n, 2)
        if p.cls == "salu" and "m0" in p.wr and c.lds_dma: n = max(n, 1)
        return n
    def I(self, text, tag=None):
        for line in text.strip().split("\n"):
            line = line.split(";")[0].strip()
            if line: self._I(line, tag)
    def _I(self, text, tag):
        i = classify(text)
        if i.op == "s_barrier" or i.op.startswith(("s_waitcnt", "s_nop")):
            n = 1
            if i.op == "s_nop": n = int(text.split()[1]) + 1
            assert not i.op.startswith("s_waitcnt"), "use wait_* helpers"
            self._put(text, n); return
        self._auto_wait(i)
        need = 0
        for (p, a) in self.st.hist: need = max(need, self._need(p, i) - a)
        while need > 0:
            k = min(need, 16); self._put(f"s_nop {k-1}", k); need -= k; self.nnop += 1
        if i.cls == "vmem":
            if len(self.st.vm) >= 63: self.wait_vm(62)
        self._put(text)
        self.st.hist.append((i, 0))
        if i.cls == "vmem": self.st.vm.append((set(i.wr), tag, set(i.rd) if not i.wr else set()))
        elif i.cls == "ds": self.st.lg.append((set(i.wr), tag, False, set(i.rd) if not i.wr else set()))
        elif i.cls == "smem": self.st.lg.append((set(i.wr), tag, True, set()))
    def text(self): return "\n".join(self.lines) + "\n"

def vr(b, n=1): return f"v{b}" if n == 1 else f"v[{b}:{b+n-1}]"
def ar(b, n=1): return f"a{b}" if n == 1 else f"a[{b}:{b+n-1}]"
def sr(b, n=1): return f"s{b}" if n == 1 else f"s[{b}:{b+n-1}]"
```

```python
from common import *

def gen_ka(e, diag=False, name="ka_kernel", rot=True, ldflag="", stflag="", abl=()):
    kernel_begin(e, name)
    S = Stamper(e, diag, 0)
    S.stamp(0)
    if diag: e.I('s_memtime s[92:93]')
    RSTD = 0x20000
    e.I(f"""
s_cmp_ge_u32 s2, 256
s_cbranch_scc1 L{name}_end
s_load_dwordx4 s[8:11], s[0:1], 0
s_load_dwordx2 s[12:13], s[0:1], 72
""")
    code_touch(e, name, 2, 127, 512)
    e.I(f"""
s_and_b32 s31, s2, 7
s_lshr_b32 s32, s2, 3
s_lshr_b32 s28, s31, 1
s_lshl_b32 s28, s28, 2
s_and_b32 s33, s32, 3
s_add_u32 s28, s28, s33
s_and_b32 s29, s31, 1
s_lshl_b32 s29, s29, 3
s_lshr_b32 s34, s32, 2
s_add_u32 s29, s29, s34
s_cmp_eq_u32 s29, 15
s_cbranch_scc1 L{name}_end
v_lshrrev_b32 v4, 6, v0
v_and_b32 v1, 63, v0
v_readfirstlane_b32 s30, v4
""")
    if rot:
        e.I("""
s_mul_i32 s40, s33, 3
s_add_u32 s40, s40, s34
s_cmp_ge_u32 s40, 10
s_cselect_b32 s41, 10, 0
s_sub_u32 s40, s40, s41
""")
    else:
        e.I("s_mov_b32 s40, 0")
    e.I(f"s_cmp_ge_u32 s30, 4\ns_cbranch_scc1 L{name}_helper")
    st0 = e.save()

    e.I("""
s_lshr_b32 s35, s30, 1
s_and_b32 s36, s30, 1
v_and_b32 v112, 31, v1
v_lshrrev_b32 v113, 5, v1
v_bfe_u32 v114, v1, 1, 3
s_lshl_b32 s37, s35, 13
v_lshlrev_b32 v115, 7, v112
v_add_u32 v115, s37, v115
""")
    for j in range(4):
        e.I(f"v_add_u32 v116, {2*j}, v113\nv_xor_b32 v116, v116, v114\nv_lshl_add_u32 v{2+j}, v116, 4, v115")
    e.I("""
v_lshlrev_b32 v6, 11, v113
v_bfe_u32 v116, v1, 2, 2
v_lshl_add_u32 v6, v116, 6, v6
v_bfe_u32 v116, v1, 4, 1
v_lshl_add_u32 v6, v116, 5, v6
v_and_b32 v116, 1, v1
v_lshl_add_u32 v6, v116, 4, v6
v_bfe_u32 v116, v1, 1, 1
v_lshl_add_u32 v6, v116, 3, v6
s_lshl_b32 s37, s36, 9
s_add_u32 s37, s37, 16384
v_add_u32 v6, s37, v6
""")
    for j in range(5): e.I(f"v_add_u32 v{7+j}, 0x10000, v{2+j}")
    e.I(f"""
v_lshlrev_b32 v12, 15, v113
v_lshl_add_u32 v12, v112, 4, v12
s_lshl_b32 s37, s35, 8
v_lshlrev_b32 v13, 2, v112
v_add_u32 v13, s37, v13
v_add_u32 v13, {hx(RSTD)}, v13
s_lshl_b32 s38, s29, 19
s_lshl_b32 s37, s36, 18
s_add_u32 s38, s38, s37
s_lshl_b32 s37, s28, 11
s_add_u32 s38, s38, s37
s_lshl_b32 s37, s35, 10
s_add_u32 s38, s38, s37
s_add_u32 s38, s38, {hx(OFF_U)}
""")
    srd(e, 24, 12, WS_END)
    acc = lambda ci, ri: 16 + (ci * 2 + ri) * 16
    xf = lambda b, ri: 80 + b * 8 + ri * 4
    wf = lambda b, ci: 96 + b * 8 + ci * 4
    def reads(step):
        s, j = divmod(step, 4); b = step & 1; so = (s & 1) * 32768; hi = 5 * ((s >> 1) & 1)
        def w(ci): return [f"ds_read_b64_tr_b16 {vr(wf(b,ci)+2*rd,2)}, v{6+hi} offset:{so + j*4096 + rd*1024 + ci*256}" for rd in range(2)]
        def x(ri): return [f"ds_read_b128 {vr(xf(b,ri),4)}, v{2+j+hi} offset:{so + ri*4096}"]
        return w(0) + x(0) + x(1) + w(1)
    def mfmas(step):
        b = step & 1; out = []
        for (ci, ri) in ((0,0),(0,1),(1,0),(1,1)):
            c = "0" if step == 0 else vr(acc(ci,ri),16)
            out.append(f"v_mfma_f32_32x32x16_bf16 {vr(acc(ci,ri),16)}, {vr(wf(b,ci),4)}, {vr(xf(b,ri),4)}, {c}")
        return out
    S.stamp(1)
    e.I("s_barrier")
    S.stamp(2)
    for r in reads(0): e.I(r)
    NST = 41
    for step in range(NST):
        nxt = step + 1
        m = mfmas(step)
        if 'nomfma' in abl and step > 0: m = ['s_nop 0']*4
        rd = reads(nxt) if nxt < NST else []
        if 'noread' in abl: rd = []
        if nxt < NST and nxt % 4 == 0:
            e.wait_lg(0)
            e.I("s_barrier")
        if nxt % 4 == 0:
            for r in rd[:3]: e.I(r)
            e.I(m[0])
            for r in rd[3:]: e.I(r)
            for x in m[1:]: e.I(x)
        else:
            for k in range(4):
                e.I(m[k])
                for r in rd[2*k:2*k+2]: e.I(r)
        if nxt == NST - 1:
            e.I("ds_read_b32 v14, v13\nds_read_b32 v15, v13 offset:128")
    S.stamp(3)
    for ci in range(2):
        for ri in range(2):
            a = acc(ci, ri)
            for k in range(16): e.I(f"v_mul_f32 v{a+k}, v{14+ri}, v{a+k}")
            for i in range(2):
                o = 80 + ((ci*2+ri)*2 + i) * 4
                for k in range(4): e.I(f"v_cvt_pk_bf16_f32 v{o+k}, v{a+8*i+2*k}, v{a+8*i+2*k+1}")
                e.I(f"s_add_u32 s39, s38, {hx((4*ci + 2*i)*32768 + ri*512)}")
                e.I(f"buffer_store_dwordx4 {vr(o,4)}, v12, s[24:27], s39 offen {stflag}")
    S.stamp(4)
    if diag:
        e.wait_vm(0); e.I('s_memtime s[94:95]'); S.stamp(5)
        S.dump(30, 12, 16)
    e.I("s_endpgm")

    e.restore(st0)
    e.label(f"L{name}_helper")
    e.I("""
s_sub_u32 s35, s30, 4
v_lshrrev_b32 v13, 3, v1
v_and_b32 v14, 7, v1
v_lshrrev_b32 v60, 4, v1
s_lshl_b32 s36, s28, 7
s_lshl_b32 s37, s35, 5
s_add_u32 s36, s36, s37
v_add_u32 v15, s36, v13
v_mul_u32_u24 v15, 1280, v15
v_xor_b32 v62, v14, v60
v_xor_b32 v63, 4, v62
v_lshl_add_u32 v2, v62, 4, v15
v_lshl_add_u32 v3, v63, 4, v15
v_add_u32 v3, 10240, v3
v_add_u32 v4, 20480, v2
v_add_u32 v5, 20480, v3
""")
    e.I("""
v_bfe_u32 v61, v1, 2, 2
s_lshl_b32 s36, s35, 4
v_add_u32 v15, s36, v61
v_mul_u32_u24 v15, 3840, v15
v_lshl_add_u32 v15, v60, 6, v15
v_and_b32 v62, 3, v1
v_lshl_add_u32 v15, v62, 4, v15
s_lshl_b32 s36, s29, 8
v_add_u32 v6, s36, v15
v_add_u32 v7, 15360, v6
v_add_u32 v8, 30720, v6
v_add_u32 v9, 46080, v6
s_lshl_b32 s44, s35, 12
""")
    srd(e, 16, 8, 2048 * 1280)
    srd(e, 20, 10, 640 * 3840)
    def issue(n):
        so = (n & 3) * 32768
        out = []
        for q in range(4):
            out.append((f"s_add_u32 m0, s44, {hx(so + 16384 + q*1024)}\nbuffer_load_dwordx4 v{6+q}, s[20:23], s43 offen {ldflag} lds", ("w", n, q)))
            out.append((f"s_add_u32 m0, s44, {hx(so + q*1024)}\nbuffer_load_dwordx4 v{2+q}, s[16:19], s42 offen {ldflag} lds", ("x", n, q)))
        out[-1] = (out[-1][0] + "\ns_add_u32 s40, s40, 1\ns_cmp_eq_u32 s40, 10\ns_cselect_b32 s40, 0, s40", out[-1][1])
        out[0] = ("s_lshl_b32 s42, s40, 7\ns_mul_i32 s43, s40, 245760\n" + out[0][0], out[0][1])
        return out
    for n in range(2):
        for (x, t) in issue(n): e.I(x, tag=t)
    e.I("""
v_lshlrev_b32 v10, 4, v1
v_add_u32 v10, s44, v10
v_add_u32 v11, 0x10000, v10
v_lshlrev_b32 v58, 8, v61
v_lshl_add_u32 v58, v62, 4, v58
v_lshl_add_u32 v12, v60, 6, v58
s_add_u32 s36, s44, 16384
v_add_u32 v12, s36, v12
v_add_u32 v59, 0x10000, v12
s_mov_b32 s45, 0xffff0000
v_and_b32 v62, 1, v1
v_lshlrev_b32 v62, 4, v62
v_mov_b32 v63, 0x3f80
v_lshlrev_b32 v63, v62, v63
v_bfe_u32 v62, v1, 1, 2
""")
    for k in range(4):
        e.I(f"v_cmp_eq_u32 vcc, {k}, v62\nv_cndmask_b32 v{28+k}, 0, v63, vcc")
    for k in range(16, 28): e.I(f"v_mov_b32 v{k}, 0")
    for (x, t) in issue(2): e.I(x, tag=t)
    S.stamp(1)
    def sub_read(b):
        n, q = divmod(b, 4); so = (n & 1) * 32768 + q * 1024; hi = (n >> 1) & 1; r = 32 + (b & 1) * 8
        e.wait_tag(("x", n, q))
        e.I(f"ds_read_b128 {vr(r,4)}, v{11 if hi else 10} offset:{so}")
        e.I(f"ds_read_b128 {vr(r+4,4)}, v{59 if hi else 12} offset:{so}")
    def sub(b):
        n, q = divmod(b, 4); r = 32 + (b & 1) * 8
        out = []
        for k in range(4):
            out += [f"v_lshlrev_b32 v{48+2*k}, 16, v{r+k}", f"v_and_b32 v{49+2*k}, s45, v{r+k}"]
        out.append(f"v_mfma_f32_16x16x32_bf16 v[24:27], v[28:31], {vr(r+4,4)}, v[24:27]")
        out.append(("read", b + 2))
        for k in range(8):
            out += [f"v_add_f32 v{16+q}, v{16+q}, v{48+k}", f"v_fmac_f32 v{20+q}, v{48+k}, v{48+k}"]
        return out
    for n in range(10):
        e.wait_tag(("x", n, 3))
        e.I("s_barrier")
        if n == 0:
            S.stamp(2)
            if 'nostats' not in abl: sub_read(0); sub_read(1)
        if n == 9: break
        ld = issue(n + 3) if n + 3 < 10 else []
        va = []
        for b in range(-(-40*n//9), -(-40*(n+1)//9)): va += sub(b)
        if 'nostats' in abl: va = []
        li = 0
        for k, x in enumerate(va):
            if k % 11 == 0 and li < len(ld): e.I(ld[li][0], tag=ld[li][1]); li += 1
            if isinstance(x, tuple):
                if x[1] < 40: sub_read(x[1])
            else: e.I(x)
        while li < len(ld): e.I(ld[li][0], tag=ld[li][1]); li += 1
    S.stamp(3)
    dp = "row_mask:0xf bank_mask:0xf"
    for ctl in ("quad_perm:[1,0,3,2]", "quad_perm:[2,3,0,1]", "row_half_mirror"):
        for k in range(16, 24): e.I(f"v_add_f32_dpp v{k}, v{k}, v{k} {ctl} {dp}")
    e.I(f"""
s_mov_b32 s46, {hx(f2u(1.0/640))}
s_mov_b32 s47, {hx(f2u(EPS))}
s_cmp_lt_u32 s29, 5
s_cselect_b32 s48, {hx(f2u(QSCALE))}, 1.0
s_lshl_b32 s36, s35, 7
s_add_u32 s36, s36, {hx(RSTD)}
v_lshlrev_b32 v13, 2, v13
v_add_u32 v13, s36, v13
v_cmp_gt_u32 s[50:51], 32, v1
""")
    steps = ["v_mul_f32 v{m}, s46, v{m}", "v_mul_f32 v{s}, s46, v{s}", "v_fma_f32 v{s}, -v{m}, v{m}, v{s}",
             "v_cvt_pk_bf16_f32 v{o}, -v{m}, -v{m}", "v_max_f32 v{s}, 0, v{s}", "v_mov_b32 v{o1}, v{o}", "v_add_f32 v{s}, s47, v{s}",
             "v_mov_b32 v{o2}, v{o}", "v_rsq_f32 v{s}, v{s}", "v_mov_b32 v{o3}, v{o}", "ds_write_b128 v11, v[{o}:{o3}] offset:{xo}", "v_mul_f32 v{s}, s48, v{s}",
             "ds_write_b32 v13, v{s} offset:{ro}"]
    for stp in steps:
        for q in range(4):
            o = 32 + 4*q
            e.I(stp.format(m=16+q, s=20+q, o=o, o1=o+1, o2=o+2, o3=o+3, xo=q*1024, ro=q*32))
    steps = ["v_cvt_pk_bf16_f32 v{h}, v{a}, v{b}", "v_lshlrev_b32 v{t}, 16, v{h}", "v_and_b32 v{u}, s45, v{h}", "v_sub_f32 v{t}, v{a}, v{t}",
             "v_sub_f32 v{u}, v{b}, v{u}", "v_cvt_pk_bf16_f32 v{t}, v{t}, v{u}", "v_cndmask_b32 v{h}, v{t}, v{h}, s[50:51]"]
    for stp in steps:
        for k in range(2): e.I(stp.format(h=48+k, a=24+2*k, b=25+2*k, t=52+2*k, u=53+2*k))
    e.I("""
s_lshl_b32 s36, s35, 10
s_add_u32 s36, s36, 0x14000
v_lshrrev_b32 v56, 5, v1
v_lshl_add_u32 v12, v56, 6, v58
v_and_b32 v56, 1, v60
v_lshl_add_u32 v12, v56, 3, v12
v_add_u32 v12, s36, v12
v_mov_b32 v50, 0
v_mov_b32 v51, 0
ds_write_b64 v12, v[48:49]
ds_write_b64 v12, v[50:51] offset:128
""")
    e.wait_lg(0)
    e.I("s_barrier")
    S.stamp(4)
    if diag:
        e.I('s_memtime s[94:95]'); S.stamp(5)
        S.dump(30, 12, 16)
    e.label(f"L{name}_end")
    e.I("s_endpgm")
    e.label(f"L{name}_endcode")
    return dict(name=name, grid=256, block=512, lds=RSTD + 512, kd=kd(name, 128))
```

```python
from common import *

def gen_kb(e, diag=False, name="kb_kernel", stflag="", pkld="nt", pkst="sc1", abl=()):
    kernel_begin(e, name)
    S = Stamper(e, diag, 1)
    S.stamp(0)
    KA0, KA1, KB = 0, 8192, 16384
    VA0, VA1, VB = 24576, 24576 + 8192 + 64, 24576 + 16384 + 128
    PK = 49408
    LDS = PK + 40960
    e.I(f"""
s_cmp_ge_u32 s2, 256
s_cbranch_scc1 L{name}_end
s_load_dwordx2 s[12:13], s[0:1], 72
s_load_dwordx2 s[8:9], s[0:1], 16
s_load_dwordx4 s[4:7], s[0:1], 32
s_load_dwordx2 s[10:11], s[0:1], 48
""")
    code_touch(e, name, 2, 255, 512)
    e.I(f"""
s_and_b32 s31, s2, 7
s_lshr_b32 s32, s2, 3
s_lshl_b32 s28, s31, 2
s_and_b32 s33, s32, 3
s_add_u32 s28, s28, s33
s_lshr_b32 s29, s32, 2
s_lshr_b32 s34, s28, 1
s_and_b32 s35, s28, 1
v_lshrrev_b32 v4, 6, v0
v_and_b32 v1, 63, v0
v_readfirstlane_b32 s30, v4
s_mul_i32 s36, s34, 5
s_mul_i32 s37, s35, 3
s_add_u32 s37, s37, s36
s_add_u32 s36, s36, 2
s_lshl_b32 s36, s36, 15
s_lshl_b32 s37, s37, 15
""")
    e.I(f"""
s_lshl_b32 s38, s29, 12
s_lshl_b32 s39, s30, 10
s_add_u32 s40, s38, s39
s_add_u32 s40, s40, {hx(OFF_U + 80*32768 - 4096)}
s_add_u32 s41, s40, s37
s_add_u32 s42, s41, 32768
s_add_u32 s43, s40, s36
v_lshlrev_b32 v2, 4, v1
""")
    srd(e, 24, 12, WS_END)
    V = 80 * 32768
    for (so, dst, add, tg) in (("s41", KA0, 0, "k"), ("s42", KA1, 0, "k"), ("s43", KB, 0, "kb")):
        e.I(f"s_add_u32 m0, s39, {hx(dst)}\nbuffer_load_dwordx4 v2, s[24:27], {so} offen lds", tag=tg)
    e.I(f"""
v_and_b32 v5, 31, v1
v_lshrrev_b32 v6, 5, v1
v_lshlrev_b32 v7, 4, v5
v_lshl_add_u32 v8, v6, 15, v7
v_lshl_add_u32 v9, v6, 3, v7
v_cmp_eq_u32 vcc, s35, v6
v_mov_b32 v10, {hx(OOB)}
v_cndmask_b32 v10, v10, v9, vcc
s_lshl_b32 s44, s30, 9
s_add_u32 s44, s44, s38
s_add_u32 s44, s44, {hx(OFF_U)}
s_add_u32 s45, s44, s37
s_add_u32 s46, s44, s36
buffer_load_dwordx4 v[12:15], v8, s[24:27], s45 offen
buffer_load_dwordx2 v[16:17], v10, s[24:27], s46 offen
""")
    for (so, dst, tg) in (("s41", VA0, "v"), ("s42", VA1, "v"), ("s43", VB, "vb")):
        e.I(f"s_add_u32 s47, {so}, {hx(V)}\ns_add_u32 m0, s39, {hx(dst)}\nbuffer_load_dwordx4 v2, s[24:27], s47 offen lds", tag=tg)

    e.I(f"""
s_cmp_lt_u32 s2, 108
s_cbranch_scc1 L{name}_jgu
""")
    stj = e.save()
    e.I(f"""
s_mov_b32 s50, {hx(640*1280)}
s_mov_b32 s52, 162
s_mov_b32 s54, {hx(OFF_WO)}
s_cmp_lt_u32 s2, 162
s_cselect_b32 s48, s10, s8
s_cselect_b32 s49, s11, s9
s_cselect_b32 s50, {hx(1728*1280)}, s50
s_cselect_b32 s52, 108, s52
s_cselect_b32 s53, 54, 20
s_cselect_b32 s54, {hx(OFF_WD)}, s54
s_mov_b32 s51, 0x20000
s_sub_u32 s52, s2, s52
s_mul_i32 s55, s52, 40960
s_mul_i32 s56, s30, 5120
s_add_u32 s55, s55, s56
s_add_u32 s56, s56, {hx(PK)}
s_mov_b32 m0, s56
""")
    for n in range(4): e.I(f"buffer_load_dwordx4 v2, s[48:51], s55 offen offset:{n*1024} {pkld} lds", tag="pk")
    e.I(f"s_add_u32 s55, s55, 4096\ns_add_u32 m0, s56, 4096\nbuffer_load_dwordx4 v2, s[48:51], s55 offen {pkld} lds", tag="pk")
    e.I(f"""
v_lshrrev_b32 v20, 4, v1
v_lshlrev_b32 v20, 3, v20
v_bfe_u32 v21, v1, 2, 2
v_add_u32 v20, v20, v21
v_mul_u32_u24 v20, 1280, v20
v_and_b32 v21, 3, v1
v_lshl_add_u32 v20, v21, 3, v20
s_mul_i32 s57, s30, 160
s_add_u32 s57, s57, {hx(PK)}
v_add_u32 v20, s57, v20
v_add_u32 v21, 5120, v20
s_mov_b32 s59, 32
s_mul_i32 s57, s30, 5
s_mul_i32 s57, s57, s53
s_add_u32 s57, s57, s52
s_lshl_b32 s57, s57, 10
s_add_u32 s57, s57, s54
s_lshl_b32 s58, s53, 10
s_cmp_lt_u32 s2, 182
s_cselect_b32 s57, s57, {hx(OOB)}
s_mov_b32 s60, {hx(OOB)}
s_branch L{name}_jdone
""")
    stj2 = e.save()
    e.restore(stj)
    e.label(f"L{name}_jgu")
    e.I(f"""
s_lshr_b32 s52, s2, 2
s_and_b32 s53, s2, 3
s_cmp_lt_u32 s30, 4
s_cselect_b32 s48, s4, s6
s_cselect_b32 s49, s5, s7
s_mov_b32 s50, {hx(640*3456)}
s_mov_b32 s51, 0x20000
s_and_b32 s54, s30, 3
s_mul_i32 s55, s53, 160
s_mul_i32 s56, s54, 40
s_add_u32 s55, s55, s56
s_mul_i32 s55, s55, 3456
s_lshl_b32 s56, s52, 7
s_add_u32 s55, s55, s56
v_lshrrev_b32 v20, 3, v1
v_mul_u32_u24 v20, 3456, v20
v_and_b32 v21, 7, v1
v_lshl_add_u32 v20, v21, 4, v20
s_mul_i32 s56, s30, 5120
s_add_u32 s56, s56, {hx(PK)}
""")
    for n in range(5):
        e.I(f"s_add_u32 m0, s56, {n*1024}\nbuffer_load_dwordx4 v20, s[48:51], s55 offen {pkld} lds\ns_add_u32 s55, s55, {8*3456}", tag="pk")
    e.I(f"""
v_bfe_u32 v20, v1, 4, 1
v_mul_u32_u24 v20, 20480, v20
v_lshl_add_u32 v20, v6, 10, v20
v_bfe_u32 v21, v1, 2, 2
v_lshl_add_u32 v20, v21, 7, v20
v_and_b32 v21, 1, v1
v_lshl_add_u32 v20, v21, 4, v20
v_bfe_u32 v21, v1, 1, 1
v_lshl_add_u32 v20, v21, 3, v20
s_lshr_b32 s61, s30, 2
s_mul_i32 s57, s61, 10240
s_lshl_b32 s58, s54, 5
s_add_u32 s57, s57, s58
s_add_u32 s57, s57, {hx(PK)}
v_add_u32 v20, s57, v20
v_add_u32 v21, 512, v20
s_mov_b32 s59, 2048
s_lshl_b32 s57, s52, 2
s_add_u32 s57, s57, s54
s_mul_i32 s57, s57, 41
s_add_u32 s60, s57, 40
s_mul_i32 s58, s53, 10
s_add_u32 s57, s57, s58
s_mul_i32 s58, s61, 5
s_add_u32 s57, s57, s58
s_lshl_b32 s57, s57, 10
s_add_u32 s57, s57, {hx(OFF_WGU)}
s_mov_b32 s58, 1024
s_lshl_b32 s60, s60, 10
s_add_u32 s60, s60, {hx(OFF_WGU)}
s_lshl_b32 s62, s53, 1
s_add_u32 s62, s62, s61
s_lshr_b32 s63, s62, 2
s_lshl_b32 s63, s63, 9
s_add_u32 s60, s60, s63
s_and_b32 s63, s62, 3
s_lshl_b32 s63, s63, 2
s_add_u32 s60, s60, s63
""")
    e.merge(stj2)
    e.label(f"L{name}_jdone")

    SB = 64
    Sreg = lambda t: SB + 16 * t
    KF = 208
    VF = 226
    O = 32
    M = 48
    e.I(f"""
s_lshl_b32 s64, s30, 9
v_lshl_add_u32 v22, v6, 13, v7
v_add_u32 v22, s64, v22
v_add_u32 v23, {hx(KB)}, v9
v_add_u32 v23, s64, v23
v_lshlrev_b32 v24, 6, v6
v_bfe_u32 v25, v1, 2, 2
v_lshl_add_u32 v24, v25, 4, v24
v_add_u32 v24, s64, v24
v_and_b32 v25, 1, v1
v_mul_u32_u24 v25, {VA1-VA0}, v25
v_bfe_u32 v26, v1, 1, 1
v_lshl_add_u32 v25, v26, 3, v25
v_add_u32 v25, {hx(VA0)}, v25
s_lshl_b32 s65, s35, 3
s_xor_b32 s66, s65, 8
s_add_u32 s67, s65, {hx(VB)}
s_add_u32 s68, s66, {hx(VB)}
v_mov_b32 v26, s68
v_mov_b32 v27, s67
v_and_b32 v28, 3, v1
v_cmp_eq_u32 vcc, 0, v28
v_cndmask_b32 v26, v26, v27, vcc
v_and_b32 v28, 16, v1
v_cmp_eq_u32 vcc, 0, v28
v_cndmask_b32 v25, v26, v25, vcc
v_add_u32 v24, v24, v25
""")
    e.I(f"""
s_add_u32 s69, s39, s66
v_add_u32 v25, s69, v2
v_mov_b32 v26, 0x3f803f80
v_mov_b32 v27, 0x3f803f80
s_cmp_eq_u32 s29, 0
s_cselect_b32 s70, 4, 0
s_cmp_lt_u32 s30, s70
s_cselect_b32 s70, 0xf149, 0
v_mov_b32 v28, s70
v_mov_b32 v29, 0
v_lshlrev_b32 v30, 2, v6
v_sub_u32 v30, v5, v30
""")
    MK = lambda r: 0
    pairs = [4, 6, 8, 10, 14, 16, 18, 20, 22, 32, 40, 42, 44, 46, 72, 74]
    for r in range(16):
        c = (r & 3) + 8 * (r >> 2)
        e.I(f"v_cmp_le_i32 s[{pairs[r]}:{pairs[r]+1}], {c}, v30")
    e.I("v_mov_b32 v31, 0xffff\nv_mov_b32 v56, 0xffff0000")
    for n in range(8):
        a, b = pairs[2*n], pairs[2*n+1]
        e.I(f"v_cndmask_b32 v{M+n}, 0, v31, s[{a}:{a+1}]\nv_cndmask_b32 v57, 0, v56, s[{b}:{b+1}]\nv_or_b32 v{M+n}, v{M+n}, v57")
    e.I("""
v_cmp_eq_u32 vcc, 0, v6
v_cndmask_b32 v58, 0, v26, vcc
v_mov_b32 v57, 0x3f80
v_cndmask_b32 v59, 0, v57, vcc
v_cmp_ne_u32 s[76:77], s35, v6
""")
    S.stamp(1)
    e.wait_tag("kb")
    e.I(f"ds_write_b64 v25, v[28:29] offset:{KB}")
    e.I("v_cndmask_b32 v16, v16, v57, s[76:77]")
    e.wait_tag("vb")
    e.I(f"ds_write_b64 v25, v[26:27] offset:{VB}")
    e.wait_lg(0)
    e.I("s_barrier")
    S.stamp(2)

    order = [0, 8, 1, 2, 3, 4, 5, 6, 7]
    def kread(i):
        t = order[i]; f = KF + (i % 3) * 6
        e.I(f"ds_read_b128 {vr(f,4)}, v22 offset:{t*512}\nds_read_b64 {vr(f+4,2)}, v23 offset:{t*512}")
    kread(0); kread(1)
    MX = 60
    def maxes(t, first):
        s = Sreg(t); out = []
        for k in range(8):
            m = MX + (k & 1)
            if first and k < 2: out.append(f"v_max_f32 v{m}, v{s+2*k}, v{s+2*k+1}")
            else: out.append(f"v_max3_f32 v{m}, v{s+2*k}, v{s+2*k+1}, v{m}")
        return out
    pend = []
    for i in range(9):
        t = order[i]; f = KF + (i % 3) * 6; s = Sreg(t)
        if i + 2 < 9: kread(i + 2)
        e.I(f"v_mfma_f32_32x32x16_bf16 {vr(s,16)}, {vr(f,4)}, v[12:15], 0")
        for x in pend[:6]: e.I(x)
        pend = pend[6:]
        e.I(f"v_mfma_f32_32x32x8_bf16 {vr(s,16)}, {vr(f+4,2)}, v[16:17], {vr(s,16)}")
        for x in pend[:6]: e.I(x)
        pend = pend[6:]
        if i == 2:
            pend += [f"v_cndmask_b32 v{Sreg(0)+r}, v{Sreg(0)+r}, v{Sreg(8)+r}, s[{pairs[r]}:{pairs[r]+1}]" for r in range(16)] + maxes(0, True)
        elif i >= 3:
            pend += maxes(order[i-1], False)
    pv = [(t, i) for t in (1, 2, 3, 4, 5, 6, 7, 0, 8) for i in range(2)]
    def vread(n):
        t, i = pv[n]; f = VF + (n % 6) * 4
        for j in range(2): e.I(f"ds_read_b64_tr_b16 {vr(f+2*j,2)}, v24 offset:{(32*t + 16*i + 8*j)*16}")
    for n in range(4): vread(n)
    for x in pend: e.I(x)
    for x in maxes(7, False): e.I(x)
    e.I(f"""
v_max_f32 v60, v60, v61
v_mov_b32 v61, v60
v_permlane32_swap_b32 v60, v61
v_max_f32 v60, v60, v61
v_cvt_pk_bf16_f32 v62, -v60, -v60
v_and_b32 v61, v56, v62
v_add_f32 v60, v60, v61
v_cvt_pk_bf16_f32 v63, -v60, -v60
v_bfi_b32 v62, v31, v62, v63
v_and_b32 v61, v56, v63
v_add_f32 v60, v60, v61
v_cvt_pk_bf16_f32 v63, -v60, -v60
""")
    S.stamp(3)
    def pack():
        e.wait_tag("pk")
        e.I("s_barrier")
        T = Sreg(8)
        regs = [T, T+4, T+8, T+12, KF]
        for n in range(5):
            e.I(f"ds_read_b64_tr_b16 {vr(regs[n],2)}, v20\nds_read_b64_tr_b16 {vr(regs[n]+2,2)}, v21")
            if n < 4: e.I("v_add_u32 v20, s59, v20\nv_add_u32 v21, s59, v21")
        e.I("v_mov_b32 v20, 0\nv_mov_b32 v21, 0")
        for n in range(5):
            e.I(f"buffer_store_dwordx4 {vr(regs[n],4)}, v2, s[24:27], s57 offen {pkst}\ns_add_u32 s57, s57, s58")
            for k in range(4): e.I(f"v_dot2c_f32_bf16 v{20+(k&1)}, v26, v{regs[n]+k}")
        e.I(f"""
v_add_f32 v20, v20, v21
v_mov_b32 v21, v20
v_permlane32_swap_b32 v20, v21
v_add_f32 v20, v20, v21
v_cvt_pk_bf16_f32 v21, v20, v20
v_and_b32 v25, v56, v21
v_sub_f32 v20, v20, v25
v_cvt_pk_bf16_f32 v20, v20, v20
v_bfi_b32 v20, v31, v21, v20
buffer_store_dword v20, v7, s[24:27], s60 offen {pkst}
""")
    pack()
    S.stamp(4)
    tiles = [1, 2, 3, 4, 5, 6, 7, 0]
    def sub(t): e.I(f"v_mfma_f32_32x32x8_bf16 {vr(Sreg(t),16)}, v[58:59], v[62:63], {vr(Sreg(t),16)}")
    sub(tiles[0]); sub(tiles[1])
    npv = 0
    def pvm(n, preg):
        f = VF + (n % 6) * 4
        c = "0" if n == 0 else vr(O, 16)
        e.I(f"v_mfma_f32_32x32x16_bf16 {vr(O,16)}, {vr(f,4)}, {vr(preg,4)}, {c}")
        if n + 4 < 18: vread(n + 4)
    for k, t in enumerate(tiles):
        s = Sreg(t)
        for half in range(2):
            for r in range(8): e.I(f"v_exp_f32 v{s+8*half+r}, v{s+8*half+r}")
            if half == 0:
                if k + 2 < 8: sub(tiles[k+2])
                if k > 0: pvm(npv, Sreg(tiles[k-1]) + 4); npv += 1
            else:
                if t != 0: pvm(npv, s); npv += 1
            for n in range(4): e.I(f"v_cvt_pk_bf16_f32 v{s+4*half+n}, v{s+8*half+2*n}, v{s+8*half+2*n+1}")
    s0, s8 = Sreg(0), Sreg(8)
    for n in range(8): e.I(f"v_and_b32 v{s8+n}, v{M+n}, v{s0+n}")
    for n in range(8): e.I(f"v_xor_b32 v{s0+n}, v{s8+n}, v{s0+n}")
    for preg in (s0, s0+4, s8, s8+4): pvm(npv, preg); npv += 1
    assert npv == 18
    e.I(f"""
v_bfe_u32 v20, v1, 4, 1
v_mul_u32_u24 v20, 20480, v20
v_and_b32 v21, 15, v1
v_lshl_add_u32 v20, v21, 4, v20
v_lshl_add_u32 v21, v6, 8, v20
v_mov_b32 v22, {hx(OOB)}
v_cmp_eq_u32 vcc, 0, v6
v_cndmask_b32 v20, v22, v20, vcc
s_lshl_b32 s4, s29, 4
s_lshl_b32 s5, s30, 1
s_add_u32 s4, s4, s5
s_mul_i32 s4, s4, 20480
s_add_u32 s4, s4, {hx(OFF_O)}
s_lshr_b32 s5, s37, 7
s_add_u32 s5, s5, s4
s_lshr_b32 s6, s36, 7
s_add_u32 s6, s6, s4
s_add_u32 s6, s6, s65
v_rcp_f32 v60, v{O+12}
""")
    for k in range(12): e.I(f"v_mul_f32 v{O+k}, v60, v{O+k}")
    for k in range(6): e.I(f"v_cvt_pk_bf16_f32 v{48+k}, v{O+2*k}, v{O+2*k+1}")
    e.I(f"buffer_store_dwordx4 v[48:51], v21, s[24:27], s5 offen {stflag}")
    e.I(f"buffer_store_dwordx2 v[52:53], v20, s[24:27], s6 offen {stflag}")
    S.stamp(5)
    if diag:
        e.wait_vm(0); S.stamp(6); S.dump(30, 12, 64)
    e.label(f"L{name}_end")
    e.I("s_endpgm")
    e.label(f"L{name}_endcode")
    return dict(name=name, grid=256, block=512, lds=LDS, kd=kd(name, 256))
```

```python
from common import *

def gen_ce(e, kind, diag=False, stflag="", depth=3, abl=()):
    name = f"k{kind}_kernel"
    C = kind == "c"
    NK = 20 if C else 54
    PER = 5 if C else 14
    OFF_A = OFF_O if C else OFF_HH
    OFF_W = OFF_WO if C else OFF_WD
    kernel_begin(e, name)
    S = Stamper(e, diag, 2 if C else 4)
    S.stamp(0)
    e.I(f"""
s_cmp_ge_u32 s2, 256
s_cbranch_scc1 L{name}_end
s_load_dwordx2 s[12:13], s[0:1], 72
s_load_dwordx2 s[8:9], s[0:1], {0 if C else 56}
""")
    code_touch(e, name, 2, 255, 256)
    e.I(f"""
s_and_b32 s31, s2, 7
s_lshr_b32 s32, s2, 3
s_lshr_b32 s28, s31, 1
s_lshl_b32 s28, s28, 3
s_and_b32 s33, s32, 7
s_add_u32 s28, s28, s33
s_and_b32 s29, s31, 1
s_lshl_b32 s29, s29, 2
s_lshr_b32 s34, s32, 3
s_add_u32 s29, s29, s34
v_lshrrev_b32 v4, 6, v0
v_and_b32 v1, 63, v0
v_readfirstlane_b32 s30, v4
v_lshlrev_b32 v2, 4, v1
s_mul_i32 s35, s28, {4*NK*1024}
s_mul_i32 s36, s29, {5*NK*1024}
s_mul_i32 s37, s30, {PER*1024}
s_add_u32 s35, s35, s37
s_add_u32 s36, s36, s37
""")
    for t in range(4): e.I(f"s_add_u32 s{40+t}, s35, {hx(OFF_A + t*NK*1024)}")
    for t in range(5): e.I(f"s_add_u32 s{44+t}, s36, {hx(OFF_W + t*NK*1024)}")
    if not C:
        e.I(f"s_cmp_eq_u32 s30, 3\ns_cselect_b32 s49, 0x40000000, 0\ns_add_u32 s49, s49, 1024")
    srd(e, 24, 12, WS_END)
    ACC = 16
    acc = lambda ct, tt: ACC + (tt * 5 + ct) * 4
    RING = 96
    fa = lambda s, tt: RING + (s % depth) * 36 + tt * 4
    fw = lambda s, ct: RING + (s % depth) * 36 + 16 + ct * 4
    def issue(s):
        out = []
        seq = [("w",0),("a",0),("w",1),("a",1),("w",2),("a",2),("w",3),("a",3),("w",4)]
        for (k, i) in seq:
            if k == "a": out.append(f"buffer_load_dwordx4 {vr(fa(s,i),4)}, v2, s[24:27], s{40+i} offen")
            else: out.append(f"buffer_load_dwordx4 {vr(fw(s,i),4)}, v2, s[24:27], s{44+i} offen")
        if s + 1 < PER:
            out[-1] += "\n" + (f"v_add_u32 v2, s49, v2" if (not C and s + 1 == 12) else "v_add_u32 v2, 1024, v2")
        return out
    for s in range(min(depth - 1, PER)):
        for x in issue(s): e.I(x)
    e.I(f"""
v_and_b32 v7, 15, v1
v_lshrrev_b32 v8, 4, v1
s_lshl_b32 s50, s28, 6
s_lshl_b32 s51, s30, 4
s_add_u32 s50, s50, s51
v_add_u32 v9, s50, v7
v_mul_u32_u24 v5, 1280, v9
v_lshl_add_u32 v5, v8, 3, v5
s_mul_i32 s51, s29, 160
v_add_u32 v5, s51, v5
v_and_b32 v10, 31, v9
v_lshlrev_b32 v6, 4, v10
v_lshrrev_b32 v10, 1, v8
v_lshl_add_u32 v6, v10, 9, v6
v_and_b32 v10, 1, v8
v_lshl_add_u32 v6, v10, 3, v6
s_lshr_b32 s52, s50, 5
s_mul_i32 s52, s52, 40
s_mul_i32 s53, s29, 5
s_add_u32 s52, s52, s53
s_lshl_b32 s52, s52, 10
s_add_u32 s52, s52, {hx(OFF_H)}
s_add_u32 s53, s52, 4096
""")
    srd(e, 20, 8, 2048 * 1280)
    RES = RING + depth * 36
    assert RES + 10 <= 250
    def hpk(ct): return (f"s52 offen offset:{ct*1024}" if ct < 4 else "s53 offen")
    def res_loads():
        for ct in range(5):
            if C: e.I(f"buffer_load_dwordx2 {vr(RES+2*ct,2)}, v5, s[20:23], 0 offen offset:{ct*32}")
            else: e.I(f"buffer_load_dwordx2 {vr(RES+2*ct,2)}, v6, s[24:27], {hpk(ct)}")
    S.stamp(1)
    for s in range(PER):
        nx = s + depth - 1
        ld = issue(nx) if nx < PER else []
        mm = []
        order = sorted([(ct, tt) for ct in range(5) for tt in range(4)], key=lambda x: max(2*x[0], 2*x[1]+1))
        for (ct, tt) in order:
            c = "0" if s == 0 else vr(acc(ct,tt),4)
            mm.append(f"v_mfma_f32_16x16x32_bf16 {vr(acc(ct,tt),4)}, {vr(fw(s,ct),4)}, {vr(fa(s,tt),4)}, {c}")
        li = 0
        for k, m in enumerate(mm):
            if k % 2 == 0 and li < len(ld): e.I(ld[li]); li += 1
            e.I(m)
            if s == 0 and k == 0: S.stamp(2)
        if nx == PER - 1: res_loads()
    S.stamp(3)
    e.I("v_lshlrev_b32 v3, 4, v1")
    st = e.save()
    ends = []
    for w in range(4):
        if w < 3: e.I(f"s_cmp_lg_u32 s30, {w}\ns_cbranch_scc1 L{name}_w{w+1}")
        for tt in range(4):
            if tt == w: continue
            src = (w - tt - 1) & 3
            for ct in range(5): e.I(f"ds_write_b128 v3, {vr(acc(ct,tt),4)} offset:{((tt*3+src)*5+ct)*1024}")
        for k in range(20): e.I(f"v_mov_b32 v{RING+k}, v{acc(0,w)+k}")
        e.wait_lg(0)
        if w < 3:
            e.I(f"s_branch L{name}_wd"); ends.append(e.save()); e.restore(st); e.label(f"L{name}_w{w+1}")
    for x in ends: e.merge(x)
    e.label(f"L{name}_wd")
    e.I("s_barrier")
    e.I("s_mul_i32 s54, s30, 15360\nv_add_u32 v3, s54, v3")
    for ct in range(5):
        for src in range(3): e.I(f"ds_read_b128 {vr(ACC+(ct*3+src)*4,4)}, v3 offset:{(src*5+ct)*1024}")
    e.I("s_mov_b32 s55, 0xffff0000")
    OUT = RING + 24
    for ct in range(5):
        o = RING + ct*4
        t = RING + 20
        e.I(f"v_lshlrev_b32 v{t}, 16, v{RES+2*ct}\nv_and_b32 v{t+1}, s55, v{RES+2*ct}\nv_lshlrev_b32 v{t+2}, 16, v{RES+2*ct+1}\nv_and_b32 v{t+3}, s55, v{RES+2*ct+1}")
        for k in (0, 2): e.I(f"v_pk_add_f32 {vr(o+k,2)}, {vr(o+k,2)}, {vr(t+k,2)}")
        for src in range(3):
            for k in (0, 2): e.I(f"v_pk_add_f32 {vr(o+k,2)}, {vr(o+k,2)}, {vr(ACC+(ct*3+src)*4+k,2)}")
        e.I(f"v_cvt_pk_bf16_f32 v{OUT+2*ct}, v{o}, v{o+1}\nv_cvt_pk_bf16_f32 v{OUT+2*ct+1}, v{o+2}, v{o+3}")
        if C: e.I(f"buffer_store_dwordx2 {vr(OUT+2*ct,2)}, v6, s[24:27], {hpk(ct)} {stflag}")
        else: e.I(f"buffer_store_dwordx2 {vr(OUT+2*ct,2)}, v5, s[20:23], 0 offen offset:{ct*32}")
    if C:
        e.I("s_mov_b32 s56, 0x3f803f80\nv_mov_b32 v12, 0\nv_mov_b32 v13, 0")
        for k in range(10): e.I(f"v_dot2c_f32_bf16 v12, s56, v{OUT+k}\nv_dot2c_f32_bf16 v13, v{OUT+k}, v{OUT+k}")
        for sw in ("v_permlane32_swap_b32", "v_permlane16_swap_b32"):
            e.I(f"v_mov_b32 v14, v12\nv_mov_b32 v15, v13\n{sw} v12, v14\n{sw} v13, v15\nv_add_f32 v12, v12, v14\nv_add_f32 v13, v13, v15")
        e.I(f"v_lshlrev_b32 v9, 6, v9\ns_lshl_b32 s57, s29, 3\ns_add_u32 s57, s57, {hx(OFF_ST)}\ns_mov_b64 exec, 0xffff")
        e.I(f"buffer_store_dwordx2 v[12:13], v9, s[24:27], s57 offen {stflag}")
        e.I("s_mov_b64 exec, -1")
    S.stamp(4)
    if diag:
        e.wait_vm(0); S.stamp(5); S.dump(30, 12, 16)
    e.label(f"L{name}_end")
    e.I("s_endpgm")
    e.label(f"L{name}_endcode")
    return dict(name=name, grid=256, block=256, lds=61440, kd=kd(name, 256))
```

```python
from common import *

def gen_kd(e, diag=False, name="kd_kernel", stflag="", abl=()):
    kernel_begin(e, name)
    S = Stamper(e, diag, 3)
    S.stamp(0)
    e.I(f"""
s_cmp_ge_u32 s2, 256
s_cbranch_scc1 L{name}_end
s_load_dwordx2 s[12:13], s[0:1], 72
""")
    code_touch(e, name, 2, 255, 256)
    e.I(f"""
s_and_b32 s31, s2, 7
s_lshr_b32 s32, s2, 3
s_and_b32 s28, s31, 1
s_lshl_b32 s28, s28, 3
s_and_b32 s33, s32, 7
s_add_u32 s28, s28, s33
s_lshr_b32 s29, s31, 1
s_lshl_b32 s29, s29, 2
s_lshr_b32 s34, s32, 3
s_add_u32 s29, s29, s34
v_lshrrev_b32 v4, 6, v0
v_and_b32 v1, 63, v0
v_readfirstlane_b32 s30, v4
v_lshlrev_b32 v2, 4, v1
s_lshl_b32 s35, s28, 2
s_add_u32 s35, s35, s30
s_mul_i32 s36, s35, 40960
s_add_u32 s36, s36, {hx(OFF_H)}
s_mul_i32 s37, s29, {7*41*1024}
s_add_u32 s37, s37, {hx(OFF_WGU)}
s_mul_i32 s38, s30, {41*1024}
s_add_u32 s38, s38, s37
s_lshl_b32 s39, s30, 12
s_add_u32 s40, s39, s37
""")
    srd(e, 24, 12, WS_END)
    NSLOT = 10
    NSTG = 19
    def slot(s): return (s % NSLOT) * 16384
    def dma(s):
        out = []
        if s <= 10:
            n = 4 if s < 10 else 1
            out.append(f"s_add_u32 m0, s39, {hx(slot(s))}\ns_add_u32 s41, s38, {hx(s*4096)}")
        else:
            n = 4
            out.append(f"s_add_u32 m0, s39, {hx(slot(s))}\ns_add_u32 s41, s40, {hx(4*41*1024 + (s-11)*16384)}")
        lds = [f"buffer_load_dwordx4 v2, s[24:27], s41 offen offset:{k*1024} lds" for k in range(n)]
        lds[0] = out[0] + "\n" + lds[0]
        return lds
    def hload(s):
        out = [f"buffer_load_dwordx4 {ar(16*s+4*k,4)}, v2, s[24:27], s42 offen offset:{k*1024}" for k in range(4)]
        out[0] = f"s_add_u32 s42, s36, {hx(s*4096)}\n" + out[0]
        return out
    def issue(s):
        d = [(x, ("w", s)) for x in dma(s)]
        h = [(x, None) for x in hload(s)] if s < 10 else []
        out = []
        for k in range(max(len(d), len(h))):
            if k < len(d): out.append(d[k])
            if k < len(h): out.append(h[k])
        return out
    for s in range(2):
        for (x, t) in issue(s): e.I(x, tag=t)
    e.I(f"""
v_and_b32 v5, 31, v1
v_lshrrev_b32 v6, 5, v1
v_lshlrev_b32 v7, 6, v5
v_lshl_add_u32 v7, v6, 5, v7
s_lshl_b32 s43, s35, 11
s_add_u32 s43, s43, {hx(OFF_ST)}
buffer_load_dwordx4 v[8:11], v7, s[24:27], s43 offen
buffer_load_dwordx4 v[12:15], v7, s[24:27], s43 offen offset:16
v_add_u32 v3, 0x10000, v2
v_add_u32 v4, 0x20000, v2
""")
    e.I(f"""
v_bfe_u32 v16, v1, 4, 1
v_mul_u32_u24 v16, {54*1024}, v16
v_lshl_add_u32 v16, v6, 8, v16
v_and_b32 v17, 15, v1
v_lshl_add_u32 v16, v17, 4, v16
s_mul_i32 s44, s35, {2*54*1024}
s_mul_i32 s45, s29, {7*512}
s_add_u32 s44, s44, s45
s_add_u32 s44, s44, {hx(OFF_HH)}
s_cmp_eq_u32 s29, 15
s_cselect_b32 s45, {hx(OOB)}, s44
""")
    ACC = 64; acc = lambda t: ACC + 16 * t
    WF = 32; NWF = 6
    XM = 20
    seq = []
    for ks in range(41):
        for t in range(4): seq.append((ks // 4, t * 4 + (ks & 3), t, ks))
    for f in range(123): seq.append((11 + f // 16, f % 16, 4 + f // 41, f % 41))
    def rd(i):
        s, pos, t, ks = seq[i]
        off = slot(s) + pos * 1024
        return f"ds_read_b128 {vr(WF + (i % NWF)*4, 4)}, v{2 + (off >> 16)} offset:{off & 0xffff}"
    def mf(i):
        s, pos, t, ks = seq[i]
        b = ar(4*ks, 4) if ks < 40 else vr(XM, 4)
        c = "0" if ks == 0 else vr(acc(t), 16)
        return f"v_mfma_f32_32x32x16_bf16 {vr(acc(t),16)}, {vr(WF + (i % NWF)*4, 4)}, {b}, {c}"
    stats = f"""v_add_f32 v8, v8, v10
v_add_f32 v9, v9, v11
v_add_f32 v12, v12, v14
v_add_f32 v13, v13, v15
v_add_f32 v8, v8, v12
v_add_f32 v9, v9, v13
v_mov_b32 v10, v8
v_mov_b32 v11, v9
s_mov_b32 s46, {hx(f2u(1.0/640))}
v_permlane32_swap_b32 v8, v10
v_permlane32_swap_b32 v9, v11
v_add_f32 v8, v8, v10
v_add_f32 v9, v9, v11
v_mul_f32 v8, s46, v8
v_mul_f32 v9, s46, v9
v_fma_f32 v9, -v8, v8, v9
v_max_f32 v9, 0, v9
v_add_f32 v9, {hx(f2u(EPS))}, v9
v_rsq_f32 v18, v9
v_cvt_pk_bf16_f32 v20, -v8, -v8
v_mov_b32 v21, v20
v_mov_b32 v22, v20
v_mov_b32 v23, v20
v_mul_f32 v19, {hx(f2u(-1.4426950408889634))}, v18""".split("\n")
    def epi(t):
        a = acc(t); o = 24 + (t & 1) * 4; out = []
        for k in range(8): out.append(f"v_mul_f32 v{a+k}, v19, v{a+k}")
        for k in range(8): out += [f"v_exp_f32 v{a+k}, v{a+k}", f"v_mul_f32 v{a+8+k}, v18, v{a+8+k}"]
        for k in range(8): out.append(f"v_add_f32 v{a+k}, 1.0, v{a+k}")
        for k in range(8): out.append(f"v_rcp_f32 v{a+k}, v{a+k}")
        for k in range(8): out.append(f"v_mul_f32 v{a+8+k}, v{a+k}, v{a+8+k}")
        for k in range(4): out.append(f"v_cvt_pk_bf16_f32 v{o+k}, v{a+8+2*k}, v{a+9+2*k}")
        out.append(f"buffer_store_dwordx4 {vr(o,4)}, v16, s[24:27], s{44 if t < 3 else 45} offen offset:{t*512} {stflag}")
        return out
    cost = lambda x: 2 if x.startswith(("v_exp", "v_rcp", "v_rsq", "v_perml")) else 1
    LOOK = 4
    AHEAD = 2
    N = len(seq)
    fill = []
    ldq = []
    issued = 2
    S.stamp(1)
    def enter_stage(s):
        nonlocal issued
        while ldq and ldq[0][2] <= s:
            x = ldq.pop(0); e.I(x[0], tag=x[1])
        e.wait_tag(("w", s))
        e.I("s_barrier")
        want = min(NSTG, s + (3 if s < 9 else 5) + 0)
        while issued < want and issued - NSLOT <= s - 2:
            for (x, t) in issue(issued): ldq.append((x, t, issued))
            issued += 1
    cur = -1
    for i in range(-LOOK, N):
        j = i + LOOK
        if j < N:
            if seq[j][0] != cur:
                cur = seq[j][0]; enter_stage(cur)
                if cur == 0: S.stamp(2)
                if cur == 3: fill += stats
            e.I(rd(j))
        if i >= 0:
            e.I(mf(i))
            s, pos, t, ks = seq[i]
            if i >= 2:
                _, _, t2, ks2 = seq[i-2]
                if ks2 == 40: fill += epi(t2)
            if i == 163: S.stamp(3)
        if ldq and (i % 2 == 0 or i < 0):
            x = ldq.pop(0); e.I(x[0], tag=x[1])
        budget = 4
        while fill and i >= 0 and budget >= cost(fill[0]):
            budget -= cost(fill[0]); e.I(fill.pop(0))
    S.stamp(4)
    for x in fill: e.I(x)
    for x in epi(6): e.I(x)
    S.stamp(5)
    if diag:
        e.wait_vm(0); S.stamp(6); S.dump(30, 12, 32)
    e.label(f"L{name}_end")
    e.I("s_endpgm")
    e.label(f"L{name}_endcode")
    return dict(name=name, grid=256, block=256, lds=163840, kd=kd(name, 256, 160))
```

```python
import sys
from common import *
from ka import gen_ka

HEADER = open("sequential_preLN__sliding_block__glu_gated_glu__prompt.s.ref").read().split("; Override launch geometry")[0]

def build(gens, path):
    e = Emitter()
    infos = [g(e) for g in gens]
    out = HEADER
    for i in infos:
        out += f"; @launch kernel={i['name']} grid=({i['grid']},1,1) block=({i['block']},1,1) lds={i['lds']}\n"
    out += '.amdgcn_target "amdgcn-amd-amdhsa--gfx950"\n.text\n' + e.text() + '.section .rodata,"a"\n' + "".join(i['kd'] for i in infos)
    open(path, "w").write(out)
    return e

from kb import gen_kb
from kce import gen_ce
from kdd import gen_kd
def full(diag, path, **kw):
    return build([lambda e: gen_ka(e, diag=diag), lambda e: gen_kb(e, diag=diag), lambda e: gen_ce(e, "c", diag=diag),
           lambda e: gen_kd(e, diag=diag), lambda e: gen_ce(e, "e", diag=diag)], path)
if __name__ == "__main__":
    full(True, "full_diag.s")
    full(False, "sequential_preLN__sliding_block__glu_gated_glu__prompt.s")
```

```python
from build import *
def gen_empty(e, i):
    name = f"z{i}_kernel"
    kernel_begin(e, name); e.I("s_endpgm")
    return dict(name=name, grid=256, block=256, lds=0, kd=kd(name, 32))
base = [lambda e: gen_ka(e), lambda e: gen_kb(e), lambda e: gen_ce(e, "c"), lambda e: gen_kd(e), lambda e: gen_ce(e, "e")]
build(base, "v_base.s")
build(base + [lambda e, i=i: gen_empty(e, i) for i in range(2)], "v_e2.s")
build(base + [lambda e, i=i: gen_empty(e, i) for i in range(6)], "v_e6.s")
build([lambda e, i=i: gen_empty(e, i) for i in range(2)] + base, "v_f2.s")
```

```python
import sys
from common import *
from ka import gen_ka

HEADER = open("sequential_preLN__sliding_block__glu_gated_glu__prompt.s.ref").read().split("; Override launch geometry")[0]

def build(gens, path):
    e = Emitter()
    infos = [g(e) for g in gens]
    out = HEADER
    for i in infos:
        out += f"; @launch kernel={i['name']} grid=({i['grid']},1,1) block=({i['block']},1,1) lds={i['lds']}\n"
    out += '.amdgcn_target "amdgcn-amd-amdhsa--gfx950"\n.text\n' + e.text() + '.section .rodata,"a"\n' + "".join(i['kd'] for i in infos)
    open(path, "w").write(out)
    return e

from kb import gen_kb
from kce import gen_ce
from kdd import gen_kd
def full(diag, path, **kw):
    return build([lambda e: gen_ka(e, diag=diag), lambda e: gen_kb(e, diag=diag), lambda e: gen_ce(e, "c", diag=diag),
           lambda e: gen_kd(e, diag=diag), lambda e: gen_ce(e, "e", diag=diag)], path)
from kcde import gen_cde
def full3(diag, path, **kw):
    return build([lambda e: gen_ka(e, diag=diag), lambda e: gen_kb(e, diag=diag), lambda e: gen_cde(e, diag=diag)], path)
if __name__ == "__main__":
    full3(True, "f3_diag.s")
    full3(2, "f3_cyc.s")
    full3(False, "f3.s")
```

```python
import re, copy

REG_RE = re.compile(r'\b([vas])\[(\d+):(\d+)\]|\b([vas])(\d+)\b|\b(vcc|exec|m0|scc)\b')

def regs_of(tok):
    out = []
    for m in REG_RE.finditer(tok):
        if m.group(1):
            out += [f"{m.group(1)}{i}" for i in range(int(m.group(2)), int(m.group(3)) + 1)]
        elif m.group(4):
            out.append(f"{m.group(4)}{m.group(5)}")
        else:
            out.append(m.group(6))
    return out

def split_ops(s):
    ops, depth, cur = [], 0, ""
    for ch in s:
        if ch in "[(": depth += 1
        if ch in "])": depth -= 1
        if ch == "," and depth == 0:
            ops.append(cur.strip()); cur = ""
        else:
            cur += ch
    if cur.strip(): ops.append(cur.strip())
    return ops

TRANS = ("v_exp_f32", "v_log_f32", "v_rcp_f32", "v_rsq_f32", "v_sqrt_f32", "v_sin_f32", "v_cos_f32")

class Inst:
    __slots__ = ("text", "op", "cls", "rd", "wr", "passes", "srcC", "srcAB", "dpp", "lds_dma", "wide_store", "sdata")

def classify(text):
    t = text.strip()
    sp = t.split(None, 1)
    op = sp[0]; rest = sp[1] if len(sp) > 1 else ""
    ops = split_ops(rest)
    i = Inst(); i.text = text; i.op = op; i.rd = set(); i.wr = set(); i.passes = 0; i.srcC = set(); i.srcAB = set()
    i.dpp = ("_dpp" in op) or (" row_" in t) or ("quad_perm" in t); i.lds_dma = False; i.wide_store = False; i.sdata = set()
    R = lambda k: set(regs_of(ops[k])) if k < len(ops) else set()
    allr = lambda a: set().union(*[set(regs_of(x)) for x in ops[a:]]) if len(ops) > a else set()
    if op.startswith("v_mfma"):
        i.cls = "mfma"; i.wr = R(0); i.srcAB = R(1) | R(2); i.srcC = R(3); i.rd = i.srcAB | i.srcC
        i.passes = 8 if "32x32" in op else 4
    elif op.startswith("v_cmp"):
        i.cls = "valu"; i.wr = R(0); i.rd = allr(1)
    elif op.startswith("v_readfirstlane") or op.startswith("v_readlane"):
        i.cls = "valu"; i.wr = R(0); i.rd = allr(1)
    elif op.startswith("v_permlane"):
        i.cls = "valu"; i.wr = R(0) | R(1); i.rd = R(0) | R(1)
    elif op.startswith("v_"):
        i.cls = "valu"; i.wr = R(0); i.rd = allr(1)
        if op.startswith(("v_fmac", "v_dot2c", "v_mac")) or i.dpp: i.rd |= R(0)
        if op.startswith(("v_add_co", "v_sub_co", "v_addc_co", "v_subb_co")):
            i.wr |= R(1); i.rd = allr(2)
    elif op.startswith(("buffer_load", "global_load")):
        i.cls = "vmem"
        if re.search(r'\blds\b', t) or "load_lds" in op:
            i.lds_dma = True; i.rd = allr(0) | {"m0"}
        else:
            i.wr = R(0); i.rd = allr(1)
    elif op.startswith(("buffer_store", "global_store", "global_atomic", "buffer_atomic")):
        i.cls = "vmem"; i.rd = allr(0)
        if op.endswith(("x4", "x3")):
            i.wide_store = True
            i.sdata = R(0) if op.startswith("buffer") else R(1)
    elif op.startswith(("buffer_wbl2", "buffer_inv")):
        i.cls = "vmem"
    elif op.startswith("ds_read") or op.startswith("ds_bpermute") or op.startswith("ds_swizzle"):
        i.cls = "ds"; i.wr = R(0); i.rd = allr(1)
    elif op.startswith("ds_"):
        i.cls = "ds"; i.rd = allr(0)
    elif op.startswith(("s_load", "s_buffer_load", "s_memtime", "s_memrealtime")):
        i.cls = "smem"; i.wr = R(0); i.rd = allr(1)
    elif op.startswith(("s_cmp", "s_cbranch", "s_branch", "s_barrier", "s_waitcnt", "s_nop", "s_endpgm", "s_setprio", "s_sleep", "s_setpc")):
        i.cls = "sctl"; i.rd = allr(0) if op.startswith(("s_cmp", "s_setpc")) else set()
    elif op.startswith("s_"):
        i.cls = "salu"; i.wr = R(0); i.rd = allr(1)
        if "saveexec" in op: i.wr |= {"exec"}
    else:
        raise Exception("unknown op " + text)
    return i

class State:
    def __init__(self):
        self.hist = []
        self.vm = []
        self.lg = []

class Emitter:
    def __init__(self):
        self.lines = []; self.st = State(); self.nnop = 0; self.ninst = 0
    def raw(self, s): self.lines.append(s)
    def comment(self, s): self.lines.append("  ; " + s)
    def label(self, n): self.lines.append(n + ":")
    def reset(self): self.st = State()
    def save(self): return copy.deepcopy(self.st)
    def restore(self, s): self.st = copy.deepcopy(s)
    def merge(self, other):
        self.st.hist = self.st.hist + copy.deepcopy(other.hist)
        assert len(self.st.vm) == len(other.vm) and len(self.st.lg) == len(other.lg), "merge with different outstanding counts"
    def _age(self, n):
        self.st.hist = [(i, a + n) for (i, a) in self.st.hist if a + n < 24]
    def _put(self, text, n=1):
        self.lines.append("  " + text); self._age(n); self.ninst += 1
    def wait_vm(self, n):
        n = max(0, n)
        if len(self.st.vm) > n:
            assert n <= 63
            self._put(f"s_waitcnt vmcnt({n})"); self.st.vm = self.st.vm[len(self.st.vm) - n:] if n else []
    def wait_lg(self, n):
        if len(self.st.lg) > n:
            if any(x[2] for x in self.st.lg): n = 0
            n = min(n, 14)
            if len(self.st.lg) > n:
                self._put(f"s_waitcnt lgkmcnt({n})"); self.st.lg = self.st.lg[len(self.st.lg) - n:] if n else []
    def forget_vm(self):
        assert all(not x[0] for x in self.st.vm), "forgetting a load with a destination"
        self.st.vm = []
    def wait_tag(self, tag):
        idx = [k for k, x in enumerate(self.st.vm) if x[1] == tag]
        if idx: self.wait_vm(len(self.st.vm) - 1 - max(idx))
        idx = [k for k, x in enumerate(self.st.lg) if x[1] == tag]
        if idx: self.wait_lg(len(self.st.lg) - 1 - max(idx))
    def _auto_wait(self, i):
        touch = i.rd | i.wr
        idx = [k for k, x in enumerate(self.st.vm) if x[0] & touch]
        if idx: self.wait_vm(len(self.st.vm) - 1 - max(idx))
        idx = [k for k, x in enumerate(self.st.lg) if x[0] & touch]
        if idx: self.wait_lg(len(self.st.lg) - 1 - max(idx))
        if i.cls in ("vmem", "ds") and i.wr:
            idx = [k for k, x in enumerate(self.st.lg) if len(x) > 3 and x[3] & i.wr and i.cls == "vmem"]
            if idx: self.wait_lg(len(self.st.lg) - 1 - max(idx))
            idx = [k for k, x in enumerate(self.st.vm) if x[2] & i.wr and i.cls == "ds"]
            if idx: self.wait_vm(len(self.st.vm) - 1 - max(idx))
    def _need(self, p, c):
        n = 0
        vw = {r for r in p.wr if r[0] in "va" and r != "vcc"}
        sw = {r for r in p.wr if r[0] == "s" or r == "vcc"}
        if p.cls == "valu":
            isdot = p.op.startswith("v_dot")
            if c.cls == "mfma" and vw & c.rd: n = max(n, 3 if isdot else 2)
            if p.op.startswith(TRANS) and c.cls in ("valu",) and not c.op.startswith(TRANS) and vw & c.rd: n = max(n, 1)
            if p.op.startswith(TRANS) and c.cls in ("vmem", "ds") and vw & c.rd: n = max(n, 1)
            if c.cls == "vmem" and sw & c.rd: n = max(n, 5)
            if c.cls == "valu" and sw & c.rd: n = max(n, 4 if c.op.startswith(("v_readlane", "v_writelane")) else 2)
            if c.cls == "valu" and "vcc" in sw and c.op.startswith(("v_cndmask", "v_addc", "v_subb")) and "vcc" in c.rd: n = max(n, 2)
            if c.cls in ("salu", "sctl") and sw & c.rd: n = max(n, 1)
            if c.op.startswith(("v_readfirstlane", "v_readlane")) and vw & c.rd: n = max(n, 1)
            if c.op.startswith("v_permlane") and vw & c.rd: n = max(n, 2)
            if c.dpp and vw & c.rd: n = max(n, 2)
            if isdot and (vw & (c.rd | c.wr)):
                same = (c.op == p.op)
                if not same: n = max(n, 3)
                else:
                    srcs = c.rd - c.wr
                    if vw & srcs: n = max(n, 3)
            if "exec" in p.wr and c.cls == "mfma": n = max(n, 4)
            if "exec" in p.wr and c.dpp: n = max(n, 5)
            if c.op.startswith("s_cbranch_vcc") and "vcc" in sw: n = max(n, 5)
        if p.cls == "mfma":
            big = 12 if p.passes == 8 else 8
            if c.cls == "mfma":
                if p.wr & c.srcAB: n = max(n, big)
                if p.wr & c.srcC:
                    if not (p.wr == c.srcC and p.passes == c.passes): n = max(n, 10 if p.passes == 8 else 6)
                elif p.wr & c.wr:
                    n = max(n, 10 if p.passes == 8 else 6)
            elif c.cls in ("valu", "vmem", "ds"):
                if p.wr & (c.rd | c.wr): n = max(n, big)
                if c.cls == "valu" and p.srcC & c.wr: n = max(n, 7 if p.passes == 8 else 3)
        if p.cls == "vmem" and p.wide_store and (p.sdata & c.wr): n = max(n, 2)
        if p.cls == "salu" and "m0" in p.wr and c.lds_dma: n = max(n, 1)
        return n
    def I(self, text, tag=None):
        for line in text.strip().split("\n"):
            line = line.split(";")[0].strip()
            if line: self._I(line, tag)
    def _I(self, text, tag):
        i = classify(text)
        if i.op == "s_barrier" or i.op.startswith(("s_waitcnt", "s_nop")):
            n = 1
            if i.op == "s_nop": n = int(text.split()[1]) + 1
            assert not i.op.startswith("s_waitcnt"), "use wait_* helpers"
            self._put(text, n); return
        self._auto_wait(i)
        need = 0
        for (p, a) in self.st.hist: need = max(need, self._need(p, i) - a)
        while need > 0:
            k = min(need, 16); self._put(f"s_nop {k-1}", k); need -= k; self.nnop += 1
        if i.cls == "vmem":
            if len(self.st.vm) >= 52: self.wait_vm(51)
        if i.cls in ('ds', 'smem'):
            if len(self.st.lg) >= 15: self.wait_lg(14)
        self._put(text)
        self.st.hist.append((i, 0))
        if i.cls == "vmem": self.st.vm.append((set(i.wr), tag, set(i.rd) if not i.wr else set()))
        elif i.cls == "ds": self.st.lg.append((set(i.wr), tag, False, set(i.rd) if not i.wr else set()))
        elif i.cls == "smem": self.st.lg.append((set(i.wr), tag, True, set()))
    def text(self): return "\n".join(self.lines) + "\n"

def vr(b, n=1): return f"v{b}" if n == 1 else f"v[{b}:{b+n-1}]"
def ar(b, n=1): return f"a{b}" if n == 1 else f"a[{b}:{b+n-1}]"
def sr(b, n=1): return f"s{b}" if n == 1 else f"s[{b}:{b+n-1}]"
```

```python
from common import *

OFF_FC = 15 * MB
OFF_FD = 15 * MB + 0x10000
OFF_FA = 15 * MB + 0x20000
OFF_FB = 15 * MB + 0x30000
OFF_FP = 15 * MB + 0x40000
OFF_R1 = 15 * MB + 0x50000
OFF_C1 = 15 * MB + 0x60000
OFF_EP = 15 * MB + 0xf0000
SPIN = 50000
SLP = 3
SX, SW, SO, ST_ = 4, 8, 12, 16
XCD, IDX, WV, TAG, CNT = 24, 25, 26, 27, 28
LOG2E = 1.4426950408889634
STG = 132 * 1024
LCNT = 50 * 1024

class Fused:
    def __init__(self, e, diag=False, name="all_kernel", stop=None, opt=None):
        self.e, self.diag, self.name, self.stop = e, diag, name, stop
        self.opt = opt or {}
        self.nl = 0
    def lab(self, p):
        self.nl += 1
        return f"L{p}{self.nl}"
    def poll(self, vaddr, soff, vtmp, cond_exec, imm=0):
        e = self.e; n = self.lab("poll")
        e.I(f"s_mov_b64 exec, {cond_exec}\ns_mov_b32 s{CNT}, 0")
        e.label(n)
        e.I(f"buffer_load_dword v{vtmp}, v{vaddr}, s[{SW}:{SW+3}], {soff} offen offset:{imm} sc1")
        e.I(f"s_add_u32 s{CNT}, s{CNT}, 1\ns_cmp_gt_u32 s{CNT}, {SPIN}\ns_cbranch_scc1 {n}x")
        e.I(f"v_cmp_ne_u32 vcc, s{TAG}, v{vtmp}")
        e.I(f"s_cbranch_vccz {n}x\ns_sleep {SLP}\ns_branch {n}")
        e.label(n + "x")
        e.raw("  s_waitcnt vmcnt(0)")
        e.I("s_mov_b64 exec, -1")
    def check_issue(self, vaddr, soff, vtmp, imm=0):
        self.e.I(f"buffer_load_dword v{vtmp}, v{vaddr}, s[{SW}:{SW+3}], {soff} offen offset:{imm} sc1")
    def check_finish(self, vaddr, soff, vtmp, cond_exec, imm=0):
        e = self.e; n = self.lab("chk")
        e.I(f"s_mov_b64 exec, {cond_exec}")
        e.I(f"v_cmp_ne_u32 vcc, s{TAG}, v{vtmp}")
        e.I(f"s_cbranch_vccz {n}x")
        e.raw(f"  s_mov_b32 s{CNT}, 0\n{n}:\n  s_sleep {SLP}\n  buffer_load_dword v{vtmp}, v{vaddr}, s[{SW}:{SW+3}], {soff} offen offset:{imm} sc1\n  s_add_u32 s{CNT}, s{CNT}, 1\n  s_waitcnt vmcnt(0)\n  s_cmp_gt_u32 s{CNT}, {SPIN}\n  s_cbranch_scc1 {n}x\n  v_cmp_ne_u32 vcc, s{TAG}, v{vtmp}\n  s_nop 4\n  s_cbranch_vccnz {n}")
        e.label(n + "x")
        e.I("s_mov_b64 exec, -1")
    def tag_ready(self):
        self.e.I(f"s_add_u32 s{TAG}, s{TAG}, 1")
    def setflag(self, vz, vt, soff, imm=0):
        self.e.I(f"s_mov_b64 exec, 1\nbuffer_store_dword v{vt}, v{vz}, s[{SW}:{SW+3}], {soff} offen offset:{imm} sc1\ns_mov_b64 exec, -1")
    def setflags(self, vaddr, vt, soff, ex):
        self.e.I(f"s_mov_b64 exec, {ex}\nbuffer_store_dword v{vt}, v{vaddr}, s[{SW}:{SW+3}], {soff} offen sc1\ns_mov_b64 exec, -1")
    def newstamp(self, k, dumpv):
        if self.diag and hasattr(self, "S"):
            self.S.dump(WV, 22, dumpv); self.e.I("s_mov_b64 exec, -1")
        self.S = Stamper(self.e, self.diag, k)
        self.S.stamp(0)

    def prologue(self):
        e, name = self.e, self.name
        kernel_begin(e, name)
        e.I(f"""
s_cmp_ge_u32 s2, 256
s_cbranch_scc1 L{name}_end
s_load_dwordx16 s[60:75], s[0:1], 0
s_load_dwordx4 s[20:23], s[0:1], 64
s_memrealtime s[76:77]
s_getpc_b64 s[98:99]
""")
        e.label(f"L{name}_pc")
        e.I(f"""
s_lshr_b32 s{IDX}, s2, 3
v_lshlrev_b32 v2, 5, v0
v_add_u32 v2, s{IDX}, v2
v_lshlrev_b32 v2, 7, v2
v_cmp_gt_u32 vcc, L{name}_endcode-L{name}_pc-4, v2
s_and_saveexec_b64 s[96:97], vcc
s_cbranch_execz L{name}_nt
""")
        e.raw("  global_load_dword v255, v2, s[98:99]")
        e.label(f"L{name}_nt")
        e.I(f"""
s_mov_b64 exec, -1
s_and_b32 s{XCD}, s2, 7
v_lshrrev_b32 v4, 6, v0
v_and_b32 v1, 63, v0
v_readfirstlane_b32 s{WV}, v4
""")
        self.S = Stamper(e, self.diag, 0)
    def srds(self):
        e = self.e
        srd(e, SX, 60, 2048 * 1280)
        srd(e, ST_, 62, 640 * 3840)
        srd(e, SW, 22, WS_END)
        srd(e, SO, 74, 2048 * 1280)
        if self.diag == 2: self.S.stamp(0)
        elif self.diag: e.I("s_mov_b32 s80, s76")
        self.S.stamp(1)
        e.I(f"s_add_u32 s78, s22, {hx(OFF_EP)}\ns_addc_u32 s79, s23, 0\ns_load_dword s{TAG}, s[78:79], 0")

    def lin_setup(self, sj, lds):
        e = self.e
        e.I(f"""
s_mov_b32 s50, {hx(640*1280)}
s_mov_b32 s57, {hx(OFF_WO)}
s_mov_b32 s59, {hx(OFF_FP + 576*4)}
s_cmp_lt_u32 s{sj}, 270
s_cselect_b32 s48, s72, s64
s_cselect_b32 s49, s73, s65
s_cselect_b32 s50, {hx(1728*1280)}, s50
s_cselect_b32 s57, {hx(OFF_WD)}, s57
s_cselect_b32 s59, {hx(OFF_FP + 256*4)}, s59
s_cselect_b32 s58, 54, 20
s_cselect_b32 s52, 0, 270
s_cselect_b32 s53, 8, 7
s_mov_b32 s51, 0x20000
s_sub_u32 s52, s{sj}, s52
s_mul_i32 s54, s52, 205
s_lshr_b32 s54, s54, 10
s_mul_i32 s55, s54, 5
s_sub_u32 s55, s52, s55
s_mul_i32 s56, s54, 40960
s_lshl_b32 s52, s55, 8
s_add_u32 s56, s56, s52
s_lshl_b32 s52, s55, s53
s_add_u32 s59, s59, s52
s_lshl_b32 s52, s54, 2
s_add_u32 s59, s59, s52
s_lshl_b32 s52, s55, 3
s_mul_i32 s52, s52, s58
s_add_u32 s52, s52, s54
s_lshl_b32 s52, s52, 10
s_add_u32 s57, s57, s52
s_lshl_b32 s58, s58, 10
v_mul_u32_u24 v52, 1280, v13
v_lshl_add_u32 v52, v14, 4, v52
v_lshlrev_b32 v53, 10, v60
v_lshl_add_u32 v53, v61, 7, v53
v_lshl_add_u32 v53, v62, 3, v53
v_add_u32 v53, {lds}, v53
""")
    def lin_loads(self, lds):
        for b in range(2):
            for i in range(4):
                self.e.I(f"s_add_u32 m0, {lds}, {b*4096 + i*1024}\ns_add_u32 s52, s56, {hx(b*128 + i*10240)}\nbuffer_load_dwordx4 v52, s[48:51], s52 offen nt lds", tag="raw")
    def lin_run(self):
        e = self.e
        e.wait_tag("raw")
        for n in range(8):
            for r in range(2): e.I(f"ds_read_b64_tr_b16 {vr(160+4*n+2*r,2)}, v53 offset:{(n>>2)*4096 + r*512 + (n&3)*32}")
        for n in range(8):
            e.I(f"buffer_store_dwordx4 {vr(160+4*n,4)}, v41, s[{SW}:{SW+3}], s57 offen sc1\ns_add_u32 s57, s57, s58")
    def raw_setup(self):
        e = self.e
        e.I(f"""
s_cmp_lt_u32 s35, 2
s_cselect_b32 s48, s68, s70
s_cselect_b32 s49, s69, s71
s_mov_b32 s50, {hx(640*3456)}
s_mov_b32 s51, 0x20000
""")
        srd(e, 52, 72, 1728 * 1280)
        e.I(f"""
s_lshr_b32 s78, s34, 3
s_and_b32 s79, s34, 7
s_mul_i32 s56, s79, {80*3456}
s_lshl_b32 s57, s78, 7
s_add_u32 s56, s56, s57
s_and_b32 s57, s35, 1
s_mul_i32 s57, s57, {8*3456}
s_add_u32 s56, s56, s57
s_cmp_lt_u32 s34, 216
s_cselect_b32 s56, s56, {hx(OOB)}
s_mul_i32 s78, s34, 205
s_lshr_b32 s78, s78, 10
s_mul_i32 s79, s78, 5
s_sub_u32 s79, s34, s79
s_mul_i32 s57, s78, 40960
s_lshl_b32 s79, s79, 8
s_add_u32 s57, s57, s79
s_mul_i32 s79, s35, 10240
s_add_u32 s57, s57, s79
s_lshl_b32 s58, s35, 10
s_add_u32 s58, s58, {hx(STG)}
v_mul_u32_u24 v52, 3456, v13
v_lshl_add_u32 v52, v14, 4, v52
v_mul_u32_u24 v53, 1280, v13
v_lshl_add_u32 v53, v14, 4, v53
""")
    def raw_loads(self):
        for b in range(5):
            self.e.I(f"s_add_u32 m0, s58, {b*4096}\ns_add_u32 s78, s56, {hx(16*b*3456)}\nbuffer_load_dwordx4 v52, s[48:51], s78 offen nt lds", tag="raw")
        for b in range(2):
            self.e.I(f"s_add_u32 m0, s58, {(5+b)*4096}\ns_add_u32 s78, s57, {b*128}\nbuffer_load_dwordx4 v53, s[52:55], s78 offen nt lds", tag="raw")
    def pack_proc(self, F, vlin, vrho, T):
        e = self.e
        e.I(f"""
s_lshr_b32 s70, s{XCD}, 1
s_lshl_b32 s70, s70, 2
s_and_b32 s71, s{IDX}, 3
s_add_u32 s70, s70, s71
s_mul_i32 s70, s70, 15
s_and_b32 s71, s{XCD}, 1
s_lshl_b32 s71, s71, 3
s_add_u32 s70, s70, s71
s_lshr_b32 s71, s{IDX}, 2
s_add_u32 s70, s70, s71
s_and_b32 s72, s{WV}, 3
s_lshl_b32 s73, s72, 5
s_add_u32 s73, s73, {hx(STG)}
v_bfe_u32 v{T}, v1, 2, 2
v_bfe_u32 v{T+1}, v1, 4, 1
v_lshlrev_b32 v{T+2}, 11, v{T+1}
v_lshrrev_b32 v{T+3}, 5, v1
v_lshl_add_u32 v{T+2}, v{T+3}, 10, v{T+2}
v_lshl_add_u32 v{T+2}, v{T}, 7, v{T+2}
v_and_b32 v{T+3}, 1, v1
v_lshl_add_u32 v{T+2}, v{T+3}, 4, v{T+2}
v_bfe_u32 v{T+3}, v1, 1, 1
v_lshl_add_u32 v{T+2}, v{T+3}, 3, v{T+2}
v_add_u32 v{T+2}, s73, v{T+2}
""")
        for b in range(5):
            for r in range(2): e.I(f"ds_read_b64_tr_b16 {vr(F+4*b+2*r,2)}, v{T+2} offset:{b*4096 + r*512}")
        e.I(f"""
v_lshrrev_b32 v{T+3}, 4, v1
v_lshlrev_b32 v{T+3}, 10, v{T+3}
v_lshl_add_u32 v{T+3}, v{T}, 7, v{T+3}
v_and_b32 v{T+4}, 3, v1
v_lshl_add_u32 v{T+3}, v{T+4}, 3, v{T+3}
v_add_u32 v{T+3}, s73, v{T+3}
""")
        for b in range(5, 7):
            for r in range(2): e.I(f"ds_read_b64_tr_b16 {vr(F+4*b+2*r,2)}, v{T+3} offset:{b*4096 + r*512}")
        e.I(f"""
v_and_b32 v{T}, 1, v{T}
v_cmp_eq_u32 vcc, v{T}, v{T+1}
v_mov_b32 v{T}, 0x3f803f80
v_cndmask_b32 v{T+4}, 0, v{T}, vcc
v_mov_b32 v{T+5}, v{T+4}
v_mov_b32 v{T+6}, v{T+4}
v_mov_b32 v{T+7}, v{T+4}
s_lshr_b32 s73, s70, 3
s_lshl_b32 s73, s73, 2
s_add_u32 s73, s73, s72
s_mul_i32 s73, s73, {41*1024}
s_add_u32 s73, s73, {hx(OFF_WGU)}
s_and_b32 s74, s70, 7
s_lshr_b32 s75, s74, 2
s_lshl_b32 s75, s75, 9
s_and_b32 s71, s74, 3
s_lshl_b32 s71, s71, 2
s_add_u32 s75, s75, s71
s_add_u32 s75, s75, s73
s_add_u32 s75, s75, 40960
s_mul_i32 s74, s74, 5120
s_add_u32 s73, s73, s74
s_add_u32 s74, s73, 4096
""")
        for b in range(5):
            so = f"s73 offen offset:{b*1024}" if b < 4 else "s74 offen"
            e.I(f"buffer_store_dwordx4 {vr(F+4*b,4)}, v{vlin}, s[{SW}:{SW+3}], {so} sc1")
            c = "0" if b == 0 else vr(T+8, 4)
            e.I(f"v_mfma_f32_16x16x32_bf16 {vr(T+8,4)}, {vr(T+4,4)}, {vr(F+4*b,4)}, {c}")
        e.I(f"""
s_mul_i32 s73, s70, 205
s_lshr_b32 s73, s73, 10
s_mul_i32 s74, s73, 5
s_sub_u32 s74, s70, s74
s_lshl_b32 s71, s74, 6
s_add_u32 s71, s71, s73
s_lshl_b32 s71, s71, 2
s_add_u32 s71, s71, {hx(OFF_FP + 256*4)}
s_lshl_b32 s74, s74, 3
s_add_u32 s74, s74, s72
s_mul_i32 s74, s74, 54
s_add_u32 s74, s74, s73
s_lshl_b32 s74, s74, 10
s_add_u32 s74, s74, {hx(OFF_WD)}
s_add_u32 s73, s74, {4*54*1024}
buffer_store_dwordx4 {vr(F+20,4)}, v{vlin}, s[{SW}:{SW+3}], s74 offen sc1
buffer_store_dwordx4 {vr(F+24,4)}, v{vlin}, s[{SW}:{SW+3}], s73 offen sc1
s_lshl_b32 s70, s70, 2
s_add_u32 s70, s70, {hx(OFF_FP)}
v_mov_b32 v{T}, 0xffff
v_cvt_pk_bf16_f32 v{T+9}, v{T+8}, v{T+8}
v_and_b32 v{T+10}, 0xffff0000, v{T+9}
v_sub_f32 v{T+8}, v{T+8}, v{T+10}
v_cvt_pk_bf16_f32 v{T+8}, v{T+8}, v{T+8}
v_bfi_b32 v{T+8}, v{T}, v{T+9}, v{T+8}
buffer_store_dword v{T+8}, v{vrho}, s[{SW}:{SW+3}], s75 offen sc1
""")

    def phase_a(self):
        e, name, S = self.e, self.name, self.S
        RSTD = 0x20000
        e.I(f"""
s_lshr_b32 s30, s{XCD}, 1
s_lshl_b32 s30, s30, 2
s_and_b32 s32, s{IDX}, 3
s_add_u32 s30, s30, s32
s_and_b32 s31, s{XCD}, 1
s_lshl_b32 s31, s31, 3
s_lshr_b32 s33, s{IDX}, 2
s_add_u32 s31, s31, s33
v_lshrrev_b32 v13, 3, v1
v_and_b32 v14, 7, v1
v_lshrrev_b32 v60, 4, v1
v_bfe_u32 v61, v1, 2, 2
v_and_b32 v62, 3, v1
v_and_b32 v64, 31, v1
v_lshrrev_b32 v65, 5, v1
s_cmp_lt_u32 s{WV}, 4
s_cbranch_scc1 LA_comp
s_cmp_eq_u32 s31, 15
s_cbranch_scc1 LA_comp
""")
        st0 = e.save()
        e.I(f"""
s_mul_i32 s40, s32, 3
s_add_u32 s40, s40, s33
s_cmp_ge_u32 s40, 10
s_cselect_b32 s41, 10, 0
s_sub_u32 s40, s40, s41
s_sub_u32 s35, s{WV}, 4
s_lshl_b32 s36, s30, 7
s_lshl_b32 s37, s35, 5
s_add_u32 s47, s36, s37
v_add_u32 v15, s47, v13
v_mul_u32_u24 v15, 1280, v15
v_xor_b32 v66, v14, v60
v_xor_b32 v63, 4, v66
v_lshl_add_u32 v2, v66, 4, v15
v_lshl_add_u32 v3, v63, 4, v15
v_add_u32 v3, 10240, v3
v_add_u32 v4, 20480, v2
v_add_u32 v5, 20480, v3
s_lshl_b32 s36, s35, 4
v_add_u32 v15, s36, v61
v_mul_u32_u24 v15, 3840, v15
v_lshl_add_u32 v15, v60, 6, v15
v_lshl_add_u32 v15, v62, 4, v15
s_lshl_b32 s36, s31, 8
v_add_u32 v6, s36, v15
v_add_u32 v7, 15360, v6
v_add_u32 v8, 30720, v6
v_add_u32 v9, 46080, v6
s_lshl_b32 s44, s35, 12
""")
        self.srds()
        def issue(n):
            so = (n & 3) * 32768
            e.I("s_lshl_b32 s42, s40, 7\ns_mul_i32 s43, s40, 245760")
            for q in range(4):
                e.I(f"s_add_u32 m0, s44, {hx(so + 16384 + q*1024)}\nbuffer_load_dwordx4 v{6+q}, s[{ST_}:{ST_+3}], s43 offen lds", tag=("st", n))
                e.I(f"s_add_u32 m0, s44, {hx(so + q*1024)}\nbuffer_load_dwordx4 v{2+q}, s[{SX}:{SX+3}], s42 offen lds", tag=("st", n))
            e.I("s_add_u32 s40, s40, 1\ns_cmp_eq_u32 s40, 10\ns_cselect_b32 s40, 0, s40")
        issue(0); issue(1)
        e.I(f"""
v_lshlrev_b32 v40, 4, v64
s_lshl_b32 s45, s47, 4
s_add_u32 s45, s45, {hx(OFF_R1)}
v_lshlrev_b32 v41, 4, v1
s_lshl_b32 s46, s31, 4
s_lshl_b32 s36, s35, 2
s_add_u32 s46, s46, s36
s_lshl_b32 s46, s46, 10
s_add_u32 s46, s46, {hx(OFF_C1)}
v_lshlrev_b32 v43, 3, v64
s_lshl_b32 s36, s35, 8
s_add_u32 s36, s36, {hx(RSTD)}
v_add_u32 v43, s36, v43
v_lshlrev_b32 v44, 8, v61
v_lshl_add_u32 v44, v62, 4, v44
v_lshl_add_u32 v44, v65, 6, v44
v_and_b32 v45, 1, v60
v_lshl_add_u32 v44, v45, 3, v44
s_lshl_b32 s36, s35, 11
s_add_u32 s36, s36, 0x14000
v_add_u32 v44, s36, v44
s_cmp_lt_u32 s31, 5
s_cselect_b32 s47, {hx(f2u(QSCALE))}, 1.0
v_mov_b32 v38, 0
v_mov_b32 v46, {hx(RSTD + 1024)}
ds_write_b32 v46, v38
s_mul_i32 s34, s30, 15
s_add_u32 s34, s34, s31
""")
        def rec_loads(I, **k):
            I(f"buffer_load_dwordx4 v[128:131], v40, s[{SW}:{SW+3}], s45 offen sc1", **k)
            for n in range(4): I(f"buffer_load_dwordx4 {vr(132+4*n,4)}, v41, s[{SW}:{SW+3}], s46 offen offset:{n*1024} sc1", **k)
        ends = []
        self.tag_ready()
        self.raw_setup()
        issue(2)
        e.wait_lg(0)
        for n in range(10):
            e.wait_tag(("st", n))
            e.I("s_barrier")
            if self.opt.get('astamp'):
                if n in (0,2,4,6,7,8,9): S.stamp({0:1,2:2,4:3,6:4,7:5,8:6,9:7}[n])
            elif n == 0: S.stamp(2)
            if n + 3 < 10: issue(n + 3)
            if n == 6: rec_loads(e.I, tag="rec")
            if n == 8:
                lb = self.lab("rec")
                e.I(f"v_mov_b32 v39, s{TAG}\ns_mov_b32 s{CNT}, 0")
                e.wait_tag("rec")
                e.label(lb)
                e.raw("  v_xor_b32 v46, v130, v39")
                for k in range(4): e.raw(f"  v_xor_b32 v47, v{134+4*k}, v39\n  v_or_b32 v46, v46, v47")
                e.raw(f"  v_cmp_ne_u32 vcc, 0, v46\n  s_add_u32 s{CNT}, s{CNT}, 1\n  s_nop 4\n  s_cbranch_vccz {lb}ok\n  s_cmp_gt_u32 s{CNT}, {SPIN}\n  s_cbranch_scc1 {lb}ok\n  s_sleep {SLP}")
                rec_loads(lambda x: e.raw("  " + x))
                e.raw(f"  s_waitcnt vmcnt(0)\n  s_branch {lb}")
                e.label(lb + "ok")
                e.I("v_mul_f32 v129, s47, v129")
                for k in range(4): e.I(f"ds_write_b64 v44, {vr(132+4*k,2)} offset:{(k>>1)*1024 + (k&1)*128}")
                e.I("ds_write_b64 v43, v[128:129]")
                if not self.opt.get('astamp'): S.stamp(3)
            if n == self.opt.get("nraw", 8):
                self.raw_loads(); self.touches()
        e.wait_lg(0)
        e.I("s_barrier")
        if not self.opt.get('astamp'): S.stamp(4)
        e.st.vm = []
        e.I("s_branch LA_done")
        ends.append(e.save())

        e.restore(st0)
        e.label("LA_comp")
        e.I(f"""
v_and_b32 v66, 15, v1
s_lshl_b32 s36, s30, 4
s_add_u32 s36, s36, s31
s_lshl_b32 s36, s36, 3
s_lshl_b32 s37, s{WV}, 2
s_add_u32 s46, s36, s37
s_mul_i32 s36, s46, 1280
v_mul_u32_u24 v67, 1280, v65
v_lshl_add_u32 v68, v64, 3, v67
v_lshl_add_u32 v67, v64, 4, v67
v_mul_u32_u24 v69, 3840, v60
v_lshl_add_u32 v69, v66, 4, v69
s_mul_i32 s37, s30, {40*3840}
s_lshl_b32 s38, s31, 8
s_add_u32 s37, s37, s38
""")
        self.srds()
        e.I(f"s_mov_b32 s50, {hx(OOB)}\nv_mov_b32 v126, 0\ns_cmp_lt_u32 s{WV}, 2\ns_cbranch_scc0 LA_nors")
        stc = e.save()
        for p in range(2):
            e.I(f"buffer_load_dwordx4 {vr(128+10*p,4)}, v67, s[{SX}:{SX+3}], s36 offen offset:{p*2560}")
            e.I(f"buffer_load_dwordx4 {vr(132+10*p,4)}, v67, s[{SX}:{SX+3}], s36 offen offset:{p*2560+512}")
            e.I(f"buffer_load_dwordx2 {vr(136+10*p,2)}, v68, s[{SX}:{SX+3}], s36 offen offset:{p*2560+1024}")
        e.I("s_mov_b32 s48, 0x3f803f80")
        for k in range(16, 20): e.I(f"v_mov_b32 v{k}, 0")
        for k in range(10):
            for p in range(2):
                x = 128 + 10*p + k
                e.I(f"v_dot2c_f32_bf16 v{16+p}, s48, v{x}\nv_dot2c_f32_bf16 v{18+p}, v{x}, v{x}")
        dp = "row_mask:0xf bank_mask:0xf"
        for ctl in ("quad_perm:[1,0,3,2]", "quad_perm:[2,3,0,1]", "row_half_mirror", "row_mirror"):
            for k in range(16, 20): e.I(f"v_add_f32_dpp v{k}, v{k}, v{k} {ctl} {dp}")
        for k in range(16, 20): e.I(f"v_mov_b32 v{k+4}, v{k}")
        for k in range(16, 20): e.I(f"v_permlane16_swap_b32 v{k}, v{k+4}")
        for k in range(16, 20): e.I(f"v_add_f32 v{k}, v{k}, v{k+4}")
        e.I(f"""
v_cmp_eq_u32 vcc, 1, v64
v_cndmask_b32 v16, v16, v17, vcc
v_cndmask_b32 v18, v18, v19, vcc
v_mul_f32 v16, {hx(f2u(1.0/640))}, v16
v_mul_f32 v18, {hx(f2u(1.0/640))}, v18
v_fma_f32 v18, -v16, v16, v18
v_max_f32 v18, 0, v18
v_add_f32 v18, {hx(f2u(EPS))}, v18
v_rsq_f32 v129, v18
v_cvt_pk_bf16_f32 v128, -v16, -v16
v_lshlrev_b32 v126, 5, v64
v_lshl_add_u32 v126, v65, 4, v126
v_mov_b32 v37, {hx(OOB)}
v_cmp_gt_u32 vcc, 2, v64
v_cndmask_b32 v126, v37, v126, vcc
s_lshl_b32 s50, s46, 4
s_add_u32 s50, s50, {hx(OFF_R1)}
s_branch LA_s1done
""")
        stc2 = e.save()
        e.restore(stc)
        e.label("LA_nors")
        e.I(f"s_cmp_eq_u32 s{WV}, 2\ns_cbranch_scc0 LA_s1done\ns_cmp_eq_u32 s31, 15\ns_cbranch_scc1 LA_s1done")
        for n in range(10):
            e.I(f"buffer_load_dwordx4 {vr(132+4*n,4)}, v69, s[{ST_}:{ST_+3}], s37 offen\ns_add_u32 s37, s37, 15360")
        e.I(f"""
v_and_b32 v70, 1, v1
v_lshlrev_b32 v70, 4, v70
v_mov_b32 v71, 0x3f80
v_lshlrev_b32 v71, v70, v71
v_bfe_u32 v70, v1, 1, 2
""")
        for k in range(4): e.I(f"v_cmp_eq_u32 vcc, {k}, v70\nv_cndmask_b32 v{172+k}, 0, v71, vcc")
        e.I(f"""
v_lshlrev_b32 v126, 4, v1
s_lshl_b32 s50, s31, 4
s_add_u32 s50, s50, s30
s_lshl_b32 s50, s50, 10
s_add_u32 s50, s50, {hx(OFF_C1)}
""")
        e.st.vm = []
        e.merge(stc2); e.merge(stc)
        e.label("LA_s1done")
        self.tag_ready()
        e.I(f"v_mov_b32 v130, s{TAG}\nv_mov_b32 v131, s{TAG}\nv_mov_b32 v117, s{TAG}\nv_mov_b32 v116, 0")
        e.I(f"s_cmp_eq_u32 s{WV}, 2\ns_cselect_b32 s51, {hx(OOB)}, s50")
        e.I(f"buffer_store_dwordx4 v[128:131], v126, s[{SW}:{SW+3}], s51 offen sc1")
        def colsum_publish():
            e.I(f"s_cmp_eq_u32 s{WV}, 2\ns_cbranch_scc0 LA_ncs")
            stq = e.save()
            e.raw("  s_waitcnt vmcnt(0)")
            for n in range(10):
                c = "0" if n == 0 else "v[176:179]"
                e.I(f"v_mfma_f32_16x16x32_bf16 v[176:179], v[172:175], {vr(132+4*n,4)}, {c}")
            e.I("v_cmp_gt_u32 vcc, 32, v1")
            steps = ["v_cvt_pk_bf16_f32 v{h}, v{a}, v{b}", "v_lshlrev_b32 v{t}, 16, v{h}", "v_and_b32 v{u}, 0xffff0000, v{h}", "v_sub_f32 v{t}, v{a}, v{t}",
                     "v_sub_f32 v{u}, v{b}, v{u}", "v_cvt_pk_bf16_f32 v{t}, v{t}, v{u}", "v_cndmask_b32 v{h}, v{t}, v{h}, vcc"]
            for stp in steps:
                for k in range(2): e.I(stp.format(h=128+k, a=176+2*k, b=177+2*k, t=180+2*k, u=181+2*k))
            e.I(f"buffer_store_dwordx4 v[128:131], v126, s[{SW}:{SW+3}], s50 offen sc1")
            e.st.vm.pop()
            e.merge(stq)
            e.label("LA_ncs")
        e.I("s_cmp_eq_u32 s31, 15\ns_cbranch_scc0 LA_main")
        stm = e.save()
        e.I(f"s_lshl_b32 s34, s30, 3\ns_add_u32 s34, s34, s{WV}\ns_lshl_b32 s79, s{WV}, 13\nv_lshlrev_b32 v41, 4, v1")
        e.wait_vm(0)
        e.label("LA_sp")
        e.I("s_cmp_lt_u32 s34, 100\ns_cselect_b32 s78, 270, 0\ns_cselect_b32 s77, 0, 140\ns_add_u32 s78, s78, s77\ns_add_u32 s78, s78, s34")
        self.lin_setup(78, "s79")
        self.lin_loads("s79")
        self.lin_run()
        e.wait_vm(0)
        self.setflag(116, 117, "s59")
        e.forget_vm()
        e.I("s_add_u32 s34, s34, 128\ns_cmp_lt_u32 s34, 130\ns_cbranch_scc1 LA_sp")
        S.stamp(5)
        e.I("s_barrier\ns_branch LA_done")
        ends.append(e.save())

        e.restore(stm)
        e.label("LA_main")
        e.I(f"""
s_lshr_b32 s35, s{WV}, 1
s_and_b32 s36, s{WV}, 1
v_bfe_u32 v114, v1, 1, 3
s_lshl_b32 s37, s35, 13
v_lshlrev_b32 v115, 7, v64
v_add_u32 v115, s37, v115
""")
        for j in range(4):
            e.I(f"v_add_u32 v112, {2*j}, v65\nv_xor_b32 v112, v112, v114\nv_lshl_add_u32 v{2+j}, v112, 4, v115")
        e.I("""
v_lshlrev_b32 v6, 11, v65
v_lshl_add_u32 v6, v61, 6, v6
v_and_b32 v112, 1, v60
v_lshl_add_u32 v6, v112, 5, v6
v_and_b32 v112, 1, v1
v_lshl_add_u32 v6, v112, 4, v6
v_bfe_u32 v112, v1, 1, 1
v_lshl_add_u32 v6, v112, 3, v6
s_lshl_b32 s37, s36, 9
s_add_u32 s37, s37, 16384
v_add_u32 v6, s37, v6
""")
        for j in range(5): e.I(f"v_add_u32 v{7+j}, 0x10000, v{2+j}")
        e.I(f"""
v_lshlrev_b32 v12, 15, v65
v_lshl_add_u32 v12, v64, 4, v12
s_lshl_b32 s37, s35, 9
v_lshlrev_b32 v13, 3, v64
v_add_u32 v13, s37, v13
v_add_u32 v13, {hx(RSTD)}, v13
s_lshl_b32 s38, s31, 19
s_lshl_b32 s37, s36, 18
s_add_u32 s38, s38, s37
s_lshl_b32 s37, s30, 11
s_add_u32 s38, s38, s37
s_lshl_b32 s37, s35, 10
s_add_u32 s38, s38, s37
s_add_u32 s38, s38, {hx(OFF_U)}
s_mul_i32 s42, s31, 52
s_lshr_b32 s42, s42, 8
s_mul_i32 s43, s42, 5
s_sub_u32 s43, s31, s43
s_lshl_b32 s44, s43, 4
s_mul_i32 s45, s44, 26
s_lshr_b32 s45, s45, 8
s_add_u32 s44, s44, 16
v_lshrrev_b32 v118, 1, v1
v_add_u32 v118, s45, v118
v_and_b32 v119, 1, v1
s_lshr_b32 s46, s30, 1
v_add_u32 v120, s46, v119
v_mul_u32_u24 v121, 10, v118
v_lshrrev_b32 v122, 4, v121
v_sub_u32 v122, s43, v122
s_and_b32 s46, s30, 1
s_add_u32 s46, s46, 2
s_lshl_b32 s46, s46, 3
s_lshl_b32 s47, s42, 1
s_add_u32 s46, s46, s47
v_add_u32 v122, s46, v122
v_lshlrev_b32 v123, 4, v119
v_sub_u32 v122, v122, v123
v_lshl_add_u32 v123, v118, 3, v120
v_lshlrev_b32 v123, 8, v123
v_lshl_add_u32 v123, v122, 2, v123
v_mov_b32 v124, {hx(OOB)}
v_cmp_gt_u32 vcc, s44, v121
v_cndmask_b32 v123, v124, v123, vcc
v_cmp_gt_u32 vcc, 8, v120
v_cndmask_b32 v123, v124, v123, vcc
s_mov_b32 s42, {hx(OFF_FA)}
v_mov_b32 v124, {hx(RSTD + 1024)}
v_mov_b32 v125, 1
""")
        acc = lambda ci, ri: 16 + (ci * 2 + ri) * 16
        xf = lambda b, ri: 80 + b * 8 + ri * 4
        wf = lambda b, ci: 96 + b * 8 + ci * 4
        def reads(step):
            s, j = divmod(step, 4); b = step & 1; so = (s & 1) * 32768; hi = 5 * ((s >> 1) & 1)
            def w(ci): return [f"ds_read_b64_tr_b16 {vr(wf(b,ci)+2*rd,2)}, v{6+hi} offset:{so + j*4096 + rd*1024 + ci*256}" for rd in range(2)]
            def x(ri):
                if step == 40: return [f"ds_read_b64 {vr(112+2*ri,2)}, v13 offset:{ri*256}"]
                if step == 41: return ["s_nop 0"]
                return [f"ds_read_b128 {vr(xf(b,ri),4)}, v{2+j+hi} offset:{so + ri*4096}"]
            return w(0) + x(0) + x(1) + w(1)
        def mfmas(step):
            b = step & 1; out = []
            for (ci, ri) in ((0,0),(0,1),(1,0),(1,1)):
                c = "0" if step == 0 else vr(acc(ci,ri),16)
                out.append(f"v_mfma_f32_32x32x16_bf16 {vr(acc(ci,ri),16)}, {vr(wf(b,ci),4)}, {vr(xf(0 if step >= 40 else b,ri),4)}, {c}")
            return out
        S.stamp(1)
        e.I("s_barrier")
        S.stamp(2)
        for r in reads(0): e.I(r)
        NST = 42
        for step in range(NST):
            nxt = step + 1
            m = mfmas(step)
            rd = reads(nxt) if nxt < NST else []
            if nxt < NST and nxt % 4 == 0:
                e.wait_lg(0); e.I("s_barrier")
                for r in rd[:3]: e.I(r)
                e.I(m[0])
                for r in rd[3:]: e.I(r)
                for x in m[1:]: e.I(x)
            else:
                for k in range(4):
                    e.I(m[k])
                    for r in rd[2*k:2*k+2]: e.I(r)
            if step == 5: colsum_publish()
            if nxt == 40:
                for ri in range(2):
                    for k in range(4): e.I(f"v_mov_b32 v{xf(0,ri)+k}, v{112+2*ri}")
        S.stamp(3)
        for ci in range(2):
            for ri in range(2):
                a = acc(ci, ri)
                for k in range(0, 16, 2): e.I(f"v_pk_mul_f32 {vr(a+k,2)}, {vr(a+k,2)}, {vr(112+2*ri,2)} op_sel:[0,1] op_sel_hi:[1,1]")
                for i in range(2):
                    o = 80 + ((ci*2+ri)*2 + i) * 4
                    for k in range(4): e.I(f"v_cvt_pk_bf16_f32 v{o+k}, v{a+8*i+2*k}, v{a+8*i+2*k+1}")
                    e.I(f"s_add_u32 s39, s38, {hx((4*ci + 2*i)*32768 + ri*512)}")
                    e.I(f"buffer_store_dwordx4 {vr(o,4)}, v12, s[{SW}:{SW+3}], s39 offen sc1")
        S.stamp(4)
        e.wait_vm(0)
        e.I("s_mov_b64 exec, 1")
        e.raw("  ds_add_rtn_u32 v126, v124, v125\n  s_waitcnt lgkmcnt(0)")
        e.I("v_readfirstlane_b32 s43, v126\ns_cmp_eq_u32 s43, 3\ns_cselect_b32 s42, s42, " + hx(OOB))
        self.setflags(123, 117, "s42", "63")
        S.stamp(5)
        e.forget_vm()
        for x in ends: e.merge(x)
        e.label("LA_done")

    def touches(self):
        e = self.e
        e.I(f"""
s_lshr_b32 s56, s{IDX}, 2
s_mul_i32 s56, s56, {16*20480}
s_lshl_b32 s57, s{XCD}, 1
s_bfe_u32 s58, s{IDX}, 0x10001
s_add_u32 s57, s57, s58
s_mul_i32 s57, s57, 1280
s_add_u32 s56, s56, s57
s_add_u32 s56, s56, {hx(OFF_O + 512)}
s_cmp_eq_u32 s35, 2
s_cselect_b32 s56, s56, {hx(OOB)}
v_lshrrev_b32 v52, 1, v64
v_mul_u32_u24 v52, 20480, v52
v_and_b32 v53, 1, v1
v_lshl_add_u32 v52, v53, 7, v52
buffer_load_dword v254, v52, s[{SW}:{SW+3}], s56 offen sc1
""")

    def finish(self):
        e, name = self.e, self.name
        e.I(f"s_or_b32 s30, s2, s{WV}\ns_cmp_eq_u32 s30, 0\ns_cselect_b32 s30, {hx(OFF_EP)}, -1\ns_lshr_b32 s30, s30, 0\nv_mov_b32 v12, 0\nv_mov_b32 v13, s{TAG}")
        e.I(f"s_min_u32 s30, s30, {hx(OOB)}")
        self.setflag(12, 13, "s30")
        if self.diag:
            e.wait_vm(0); self.S.stamp(7); self.S.dump(WV, 22, 16)
        e.label(f"L{name}_end")
        e.I("s_endpgm")
        e.label(f"L{name}_endcode")
        return dict(name=name, grid=256, block=512, lds=163840, kd=kd(name, 256))

def gen_all(e, diag=False, stop=None, opt=None):
    f = Fused(e, diag, stop=stop, opt=opt)
    f.prologue()
    f.phase_a()
    if stop != "a":
        from fused2 import phase_b, phase_cde
        phase_b(f)
        if stop != "b": phase_cde(f)
    return f.finish()
```

```python
from fused import *

WOL = 61440
SWR = f"s[{SW}:{SW+3}]"

def phase_b(f):
    e = f.e
    f.newstamp(1, 16); S = f.S
    KA0, KA1, KB = 0, 8192, 16384
    VA0, VA1, VB = 24576, 24576 + 8192 + 64, 24576 + 16384 + 128
    e.I(f"""
s_lshl_b32 s30, s{XCD}, 2
s_and_b32 s33, s{IDX}, 3
s_add_u32 s30, s30, s33
s_lshr_b32 s31, s{IDX}, 2
s_lshr_b32 s34, s30, 1
s_and_b32 s35, s30, 1
s_mul_i32 s36, s34, 5
s_lshl_b32 s38, s35, 1
s_add_u32 s38, s38, s36
s_mul_i32 s37, s35, 3
s_add_u32 s37, s37, s36
s_add_u32 s36, s36, 2
s_lshl_b32 s36, s36, 15
s_lshl_b32 s37, s37, 15
s_lshl_b32 s39, s31, 2
s_add_u32 s41, s39, s{WV}
s_sub_u32 s41, s41, 4
s_cselect_b32 s42, {hx(OOB)}, 0
s_mul_i32 s43, s{XCD}, 10
s_add_u32 s44, s43, 9
s_lshr_b32 s43, s43, 4
s_lshr_b32 s44, s44, 4
s_mov_b32 s45, 0x15151414
s_cmp_lg_u32 s43, s44
s_cselect_b32 s44, 0x3f3f3c3c, s45
s_cmp_eq_u32 s31, 0
s_cselect_b32 s45, 0xffff0000, -1
s_and_b32 s44, s44, s45
s_mov_b32 s45, 0
v_lshlrev_b32 v3, 2, v1
s_lshl_b32 s43, s{XCD}, 3
s_add_u32 s43, s43, s31
s_lshl_b32 s43, s43, 8
s_add_u32 s43, s43, {hx(OFF_FA)}
""")
    e.I(f"""
s_lshl_b32 s38, s31, 12
s_lshl_b32 s39, s{WV}, 10
s_add_u32 s40, s38, s39
s_add_u32 s40, s40, {hx(OFF_U + 80*32768 - 4096)}
s_add_u32 s40, s40, s42
s_add_u32 s46, s40, s37
s_add_u32 s47, s46, 32768
s_add_u32 s48, s40, s36
v_lshlrev_b32 v2, 4, v1
v_and_b32 v5, 31, v1
v_lshrrev_b32 v6, 5, v1
v_lshlrev_b32 v7, 4, v5
v_lshl_add_u32 v8, v6, 15, v7
v_lshl_add_u32 v9, v6, 3, v7
v_cmp_eq_u32 vcc, s35, v6
v_mov_b32 v10, {hx(OOB)}
v_cndmask_b32 v10, v10, v9, vcc
s_lshl_b32 s49, s{WV}, 9
s_add_u32 s50, s49, s38
s_add_u32 s50, s50, {hx(OFF_U)}
s_add_u32 s51, s50, s37
s_add_u32 s52, s50, s36
""")
    SB = 64; Sreg = lambda t: SB + 16 * t
    KF = 208; VF = 226; O = 32; M = 48
    e.I(f"""
v_lshl_add_u32 v22, v6, 13, v7
v_add_u32 v22, s49, v22
v_add_u32 v23, {hx(KB)}, v9
v_add_u32 v23, s49, v23
v_lshlrev_b32 v24, 6, v6
v_bfe_u32 v25, v1, 2, 2
v_lshl_add_u32 v24, v25, 4, v24
v_add_u32 v24, s49, v24
v_and_b32 v25, 1, v1
v_mul_u32_u24 v25, {VA1-VA0}, v25
v_bfe_u32 v26, v1, 1, 1
v_lshl_add_u32 v25, v26, 3, v25
v_add_u32 v25, {hx(VA0)}, v25
s_lshl_b32 s53, s35, 3
s_xor_b32 s54, s53, 8
s_add_u32 s55, s53, {hx(VB)}
s_add_u32 s56, s54, {hx(VB)}
v_mov_b32 v26, s56
v_mov_b32 v27, s55
v_and_b32 v28, 3, v1
v_cmp_eq_u32 vcc, 0, v28
v_cndmask_b32 v26, v26, v27, vcc
v_and_b32 v28, 16, v1
v_cmp_eq_u32 vcc, 0, v28
v_cndmask_b32 v25, v26, v25, vcc
v_add_u32 v24, v24, v25
s_add_u32 s55, s39, s54
v_add_u32 v25, s55, v2
v_mov_b32 v26, 0x3f803f80
v_mov_b32 v27, 0x3f803f80
s_cmp_lg_u32 s42, 0
s_cselect_b32 s55, 0xf149, 0
v_mov_b32 v28, s55
v_mov_b32 v29, 0
v_lshlrev_b32 v30, 2, v6
v_sub_u32 v30, v5, v30
v_mov_b32 v31, 0xffff
v_mov_b32 v56, 0xffff0000
""")
    pairs = [16, 18, 32, 56, 58, 60, 62, 64, 66, 68, 76, 78, 96, 98, 40, 54]
    S.stamp(1)
    e.I(f"s_cmp_lg_u32 s{WV}, 7\ns_cbranch_scc1 LB_np")
    f.poll(3, "s43", 4, "s[44:45]")
    e.label("LB_np")
    e.I("s_barrier")
    S.stamp(2)
    V = 80 * 32768
    for (so, dst) in (("s46", KA0), ("s47", KA1), ("s48", KB)):
        e.I(f"s_add_u32 m0, s39, {hx(dst)}\nbuffer_load_dwordx4 v2, {SWR}, {so} offen sc1 lds")
    e.I(f"buffer_load_dwordx4 v[12:15], v8, {SWR}, s51 offen sc1\nbuffer_load_dwordx2 v[16:17], v10, {SWR}, s52 offen sc1")
    for (so, dst) in (("s46", VA0), ("s47", VA1), ("s48", VB)):
        e.I(f"s_add_u32 s57, {so}, {hx(V)}\ns_add_u32 m0, s39, {hx(dst)}\nbuffer_load_dwordx4 v2, {SWR}, s57 offen sc1 lds")
    stp = e.save()
    e.I(f"s_cmp_lg_u32 s{WV}, 7\ns_cbranch_scc1 LB_np2")
    e.I(f"s_mov_b32 s72, {hx(OFF_FP)}\ns_mov_b32 s70, 0xfffff\ns_mov_b32 s71, 0xfffff")
    for k in range(9, 12): f.check_issue(3, "s72", 64 + k, imm=k*256)
    for k in range(9, 12): f.check_finish(3, "s72", 64 + k, "s[70:71]" if k < 11 else "0xfffff", imm=k*256)
    e.label("LB_np2")
    e.st.vm = stp.vm
    for r in range(16):
        c = (r & 3) + 8 * (r >> 2)
        e.I(f"v_cmp_le_i32 s[{pairs[r]}:{pairs[r]+1}], {c}, v30")
    for n in range(8):
        a, b = pairs[2*n], pairs[2*n+1]
        e.I(f"v_cndmask_b32 v{M+n}, 0, v31, s[{a}:{a+1}]\nv_cndmask_b32 v57, 0, v56, s[{b}:{b+1}]\nv_or_b32 v{M+n}, v{M+n}, v57")
    e.I("""
v_cmp_eq_u32 vcc, 0, v6
v_cndmask_b32 v58, 0, v26, vcc
v_mov_b32 v57, 0x3f80
v_cndmask_b32 v59, 0, v57, vcc
v_cmp_ne_u32 vcc, s35, v6
""")
    e.wait_vm(0)
    e.I(f"ds_write_b64 v25, v[28:29] offset:{KB}\nds_write_b64 v25, v[26:27] offset:{VB}\nv_mov_b32 v11, {hx(LCNT)}\nds_write_b32 v11, v29")
    e.I("v_cndmask_b32 v16, v16, v57, vcc")
    e.I(f"""
s_lshr_b32 s43, s{IDX}, 2
s_mul_i32 s43, s43, 102400
s_mul_i32 s44, s{WV}, 9216
s_add_u32 s43, s43, s44
s_add_u32 s43, s43, {hx(OFF_WO)}
s_add_u32 s44, s44, {hx(WOL)}
""")
    e.wait_lg(0)
    e.I("s_barrier")
    S.stamp(3)
    e.I(f"""
s_mov_b32 s70, {hx(OOB)}
s_mov_b32 s71, {hx(OOB)}
s_cmp_lt_u32 s{WV}, 4
s_cbranch_scc1 LB_npk
s_and_b32 s72, s2, 0xe1
s_cmp_eq_u32 s72, 0xe1
s_cbranch_scc1 LB_npk
""")
    stp = e.save()
    f.pack_proc(96, 2, 7, 128)
    e.forget_vm()
    e.merge(stp)
    e.label("LB_npk")
    def wodma(n):
        if n % 4 == 0: e.I(f"s_add_u32 m0, s44, {n*1024}\ns_add_u32 s45, s43, {n*1024}")
        e.I(f"buffer_load_dwordx4 v2, {SWR}, s45 offen offset:{(n%4)*1024} sc1 lds")
    order = [0, 8, 1, 2, 3, 4, 5, 6, 7]
    def kread(i):
        t = order[i]; fr = KF + (i % 3) * 6
        e.I(f"ds_read_b128 {vr(fr,4)}, v22 offset:{t*512}\nds_read_b64 {vr(fr+4,2)}, v23 offset:{t*512}")
    kread(0); kread(1)
    MX = 60
    def maxes(t, first):
        s = Sreg(t); out = []
        for k in range(8):
            m = MX + (k & 1)
            if first and k < 2: out.append(f"v_max_f32 v{m}, v{s+2*k}, v{s+2*k+1}")
            else: out.append(f"v_max3_f32 v{m}, v{s+2*k}, v{s+2*k+1}, v{m}")
        return out
    pend = []
    for i in range(9):
        t = order[i]; fr = KF + (i % 3) * 6; s = Sreg(t)
        if i + 2 < 9: kread(i + 2)
        e.I(f"v_mfma_f32_32x32x16_bf16 {vr(s,16)}, {vr(fr,4)}, v[12:15], 0")
        for x in pend[:6]: e.I(x)
        pend = pend[6:]
        e.I(f"v_mfma_f32_32x32x8_bf16 {vr(s,16)}, {vr(fr+4,2)}, v[16:17], {vr(s,16)}")
        for x in pend[:6]: e.I(x)
        pend = pend[6:]
        if i == 2:
            pend += [f"v_cndmask_b32 v{Sreg(0)+r}, v{Sreg(0)+r}, v{Sreg(8)+r}, s[{pairs[r]}:{pairs[r]+1}]" for r in range(16)] + maxes(0, True)
        elif i >= 3:
            pend += maxes(order[i-1], False)
    pv = [(t, i) for t in (1, 2, 3, 4, 5, 6, 7, 0, 8) for i in range(2)]
    def vread(n):
        t, i = pv[n]; fr = VF + (n % 6) * 4
        for j in range(2): e.I(f"ds_read_b64_tr_b16 {vr(fr+2*j,2)}, v24 offset:{(32*t + 16*i + 8*j)*16}")
    for n in range(4): vread(n)
    for x in pend: e.I(x)
    for x in maxes(7, False): e.I(x)
    e.I(f"""
v_max_f32 v60, v60, v61
v_mov_b32 v61, v60
v_permlane32_swap_b32 v60, v61
v_max_f32 v60, v60, v61
v_cvt_pk_bf16_f32 v62, -v60, -v60
v_and_b32 v61, v56, v62
v_add_f32 v60, v60, v61
v_cvt_pk_bf16_f32 v63, -v60, -v60
v_bfi_b32 v62, v31, v62, v63
v_and_b32 v61, v56, v63
v_add_f32 v60, v60, v61
v_cvt_pk_bf16_f32 v63, -v60, -v60
""")
    S.stamp(4)
    tiles = [1, 2, 3, 4, 5, 6, 7, 0]
    def sub(t): e.I(f"v_mfma_f32_32x32x8_bf16 {vr(Sreg(t),16)}, v[58:59], v[62:63], {vr(Sreg(t),16)}")
    sub(tiles[0]); sub(tiles[1])
    e.I(f"v_mov_b32 v20, 0\nv_mov_b32 v21, s{TAG}\nv_mov_b32 v18, 1")
    e.I(f"s_cmp_eq_u32 s70, {hx(OOB)}\ns_cbranch_scc1 LB_npf\ns_mov_b64 exec, 1")
    e.raw(f"""  s_waitcnt vmcnt(0)
  ds_add_rtn_u32 v19, v11, v18
  s_waitcnt lgkmcnt(0)
  v_readfirstlane_b32 s72, v19
  s_nop 1
  s_cmp_eq_u32 s72, 3
  s_cbranch_scc0 LB_npf
  buffer_store_dword v21, v20, {SWR}, s70 offen sc1
  buffer_store_dword v21, v20, {SWR}, s71 offen sc1""")
    e.label("LB_npf")
    e.I("s_mov_b64 exec, -1")
    npv = 0; nwo = 0
    def pvm(n, preg):
        fr = VF + (n % 6) * 4
        c = "0" if n == 0 else vr(O, 16)
        e.I(f"v_mfma_f32_32x32x16_bf16 {vr(O,16)}, {vr(fr,4)}, {vr(preg,4)}, {c}")
        if n + 4 < 18: vread(n + 4)
    for k, t in enumerate(tiles):
        s = Sreg(t)
        for half in range(2):
            for r in range(8):
                e.I(f"v_exp_f32 v{s+8*half+r}, v{s+8*half+r}")
                if r == 3 and half == 0 and k + 2 < 8: sub(tiles[k+2])
            if half == 0:
                if k > 0: pvm(npv, Sreg(tiles[k-1]) + 4); npv += 1
            else:
                if t != 0: pvm(npv, s); npv += 1
            if nwo < 9: wodma(nwo); nwo += 1
            for n in range(4): e.I(f"v_cvt_pk_bf16_f32 v{s+4*half+n}, v{s+8*half+2*n}, v{s+8*half+2*n+1}")
    s0, s8 = Sreg(0), Sreg(8)
    for h2 in range(2):
        for n in range(4*h2, 4*h2+4): e.I(f"v_and_b32 v{s8+n}, v{M+n}, v{s0+n}")
        for n in range(4*h2, 4*h2+4): e.I(f"v_xor_b32 v{s0+n}, v{s8+n}, v{s0+n}")
    for preg in (s0, s0+4, s8, s8+4): pvm(npv, preg); npv += 1
    assert npv == 18 and nwo == 9
    e.I(f"""
v_bfe_u32 v18, v1, 4, 1
v_mul_u32_u24 v18, 20480, v18
v_and_b32 v19, 15, v1
v_lshl_add_u32 v18, v19, 4, v18
v_lshl_add_u32 v19, v6, 8, v18
v_mov_b32 v22, {hx(OOB)}
v_cmp_eq_u32 vcc, 0, v6
v_cndmask_b32 v18, v22, v18, vcc
s_lshl_b32 s40, s31, 3
s_add_u32 s40, s40, s{WV}
s_mul_i32 s41, s40, 40960
s_add_u32 s41, s41, {hx(OFF_O)}
s_lshr_b32 s42, s37, 7
s_add_u32 s42, s42, s41
s_lshr_b32 s43, s36, 7
s_add_u32 s43, s43, s41
s_add_u32 s43, s43, s53
s_lshl_b32 s40, s31, 10
s_lshl_b32 s44, s30, 2
s_add_u32 s40, s40, s44
s_add_u32 s40, s40, {hx(OFF_FB)}
v_rcp_f32 v60, v{O+12}
""")
    for k in range(12): e.I(f"v_mul_f32 v{O+k}, v60, v{O+k}")
    for k in range(6): e.I(f"v_cvt_pk_bf16_f32 v{48+k}, v{O+2*k}, v{O+2*k+1}")
    e.I(f"buffer_store_dwordx4 v[48:51], v19, {SWR}, s42 offen sc1")
    e.I(f"buffer_store_dwordx2 v[52:53], v18, {SWR}, s43 offen sc1", tag="ost")
    S.stamp(5)


def phase_cde(f):
    e = f.e; S = f.S
    WR = 92
    e.I(f"""
s_and_b32 s56, s{XCD}, 1
s_lshl_b32 s56, s56, 3
s_and_b32 s57, s{IDX}, 7
s_add_u32 s56, s56, s57
s_lshr_b32 s57, s{XCD}, 1
s_lshl_b32 s57, s57, 2
s_lshr_b32 s58, s{IDX}, 3
s_add_u32 s57, s57, s58
s_mul_i32 s58, s57, 7
s_add_u32 s58, s58, s{WV}
s_cmp_lt_u32 s{WV}, 7
s_cselect_b32 s58, s58, 108
s_mul_i32 s59, s58, {41*1024}
s_add_u32 s59, s59, {hx(OFF_WGU)}
""")
    e.I(f"""
s_lshl_b32 s30, s{XCD}, 2
s_and_b32 s33, s{IDX}, 3
s_add_u32 s30, s30, s33
s_lshr_b32 s31, s{IDX}, 2
s_and_b32 s34, s{WV}, 3
s_lshr_b32 s35, s{WV}, 2
s_lshl_b32 s36, s30, 2
s_lshl_b32 s37, s35, 1
s_add_u32 s36, s36, s37
s_mul_i32 s41, s36, 20480
s_mul_i32 s38, s34, 5120
s_add_u32 s41, s41, s38
s_add_u32 s41, s41, {hx(OFF_O)}
s_add_u32 s42, s41, 20480
s_add_u32 s47, s41, 4096
s_add_u32 s48, s42, 4096
s_lshl_b32 s43, s30, 8
s_add_u32 s43, s43, {hx(OFF_FB)}
""")
    S.stamp(6)
    def wload(n):
        e.I(f"s_add_u32 s60, s59, {hx((n//4)*4096)}\nbuffer_load_dwordx4 {vr(WR+4*n,4)}, v2, {SWR}, s60 offen offset:{(n%4)*1024} sc1")
    wq = list(range(1, 35)); wq_late = [0] + list(range(35, 41))
    NPRE = f.opt.get("npre", 12)
    NPRE0 = f.opt.get("npre0", 0)
    for _ in range(NPRE0): wload(wq.pop(0))
    stp = e.save()
    e.I(f"s_cmp_lg_u32 s{WV}, 7\ns_cbranch_scc1 LC_np0")
    e.I(f"s_mov_b32 s72, {hx(OFF_FP)}\ns_mov_b32 s74, -1\ns_mov_b32 s75, 0x3fffff")
    for k in range(9): f.check_issue(3, "s72", 64 + k, imm=k*256)
    for k in range(9): f.check_finish(3, "s72", 64 + k, "-1" if k < 3 else "0xffffff" if k == 3 else "s[74:75]", imm=k*256)
    e.label("LC_np0")
    e.st.vm = stp.vm
    e.wait_tag("ost")
    e.I("s_barrier")
    e.I(f"v_lshlrev_b32 v20, 8, v1\nv_lshlrev_b32 v3, 2, v1\ns_cmp_eq_u32 s{WV}, 7\ns_cselect_b32 s40, s40, {hx(OOB)}")
    f.setflags(20, 21, "s40", "15")
    e.I(f"""
s_mul_i32 s44, s31, 102400
s_lshl_b32 s45, s{WV}, 12
s_add_u32 s44, s44, s45
s_add_u32 s44, s44, {hx(OFF_WO + 72*1024)}
s_add_u32 m0, s45, {hx(WOL + 72*1024)}
""")
    for n in range(4): e.I(f"buffer_load_dwordx4 v2, {SWR}, s44 offen offset:{n*1024} sc1 lds", tag="wol")
    for _ in range(NPRE): wload(wq.pop(0))
    e.I(f"""
v_and_b32 v7, 15, v1
v_lshrrev_b32 v8, 4, v1
s_lshr_b32 s49, s34, 1
s_add_u32 s50, s36, s49
s_and_b32 s51, s34, 1
s_lshl_b32 s52, s50, 4
v_add_u32 v9, s52, v7
v_mul_u32_u24 v5, 1280, v9
v_lshl_add_u32 v5, v8, 3, v5
s_mul_i32 s53, s31, 160
s_mul_i32 s54, s51, 96
s_add_u32 s53, s53, s54
v_and_b32 v10, 31, v9
v_lshlrev_b32 v6, 4, v10
v_lshrrev_b32 v10, 1, v8
v_lshl_add_u32 v6, v10, 9, v6
v_and_b32 v10, 1, v8
v_lshl_add_u32 v6, v10, 3, v6
s_lshr_b32 s54, s50, 1
s_mul_i32 s54, s54, 40
s_mul_i32 s55, s31, 5
s_add_u32 s54, s54, s55
s_mul_i32 s55, s51, 3
s_add_u32 s54, s54, s55
s_lshl_b32 s54, s54, 10
s_add_u32 s54, s54, {hx(OFF_H)}
s_add_u32 s38, s38, {hx(WOL)}
v_add_u32 v14, s38, v2
v_add_u32 v15, 0x10000, v14
""")
    resr = [252, 254, 12]
    for c in range(3): e.I(f"buffer_load_dwordx2 {vr(resr[c],2)}, v5, s[{SX}:{SX+3}], s53 offen offset:{c*32}")
    if f.diag: S.stamp(7)
    f.newstamp(2, 56); S = f.S
    ACC = 16; acc = lambda t, ct: ACC + (t * 5 + ct) * 4
    OF = 56; of = lambda s, t: OF + (s * 2 + t) * 4
    CW = 232
    def cwread(s, ct):
        off = ct * 20480 + s * 1024
        e.I(f"ds_read_b128 {vr(CW + ct*4, 4)}, v{14 + (off >> 16)} offset:{off & 0xffff}")
    for ct in range(3): cwread(0, ct)
    e.wait_tag("wol")
    stp = e.save()
    e.I(f"s_cmp_lg_u32 s{WV}, 7\ns_cbranch_scc1 LC_np\ns_mov_b32 s44, -1\ns_mov_b32 s45, 0")
    f.poll(3, "s43", 4, "s[44:45]")
    e.label("LC_np")
    e.st.vm = stp.vm
    e.I("s_barrier")
    for ct in range(3, 5): cwread(0, ct)
    S.stamp(1)
    for s in range(5):
        for t in range(2):
            so = f"s{41+t} offen offset:{s*1024}" if s < 4 else f"s{47+t} offen"
            e.I(f"buffer_load_dwordx4 {vr(of(s,t),4)}, v2, {SWR}, {so} sc1")
    for _ in range(f.opt.get("nmid", 4)): wload(wq.pop(0))
    for s in range(5):
        for ct in range(5):
            for t in range(2):
                c = "0" if s == 0 else vr(acc(t,ct),4)
                e.I(f"v_mfma_f32_16x16x32_bf16 {vr(acc(t,ct),4)}, {vr(CW+ct*4,4)}, {vr(of(s,t),4)}, {c}")
            if s < 4: cwread(s + 1, ct)
    S.stamp(2)
    e.I(f"s_mul_i32 s61, s35, 30720\nv_add_u32 v3, s61, v2")
    owner = [0,0,0,1,1,2,2,2,3,3]
    OWN = 56
    st = e.save(); ends = []
    for kq in range(4):
        if kq < 3: e.I(f"s_cmp_lg_u32 s34, {kq}\ns_cbranch_scc1 LC_r{kq+1}")
        for n in range(10):
            if owner[n] == kq: continue
            src = (kq - owner[n] - 1) & 3
            e.I(f"ds_write_b128 v3, {vr(ACC+4*n,4)} offset:{(n*3+src)*1024}")
        mine = [n for n in range(10) if owner[n] == kq]
        for k in range(4*len(mine)): e.I(f"v_mov_b32 v{OWN+k}, v{ACC+4*mine[0]+k}")
        e.wait_lg(0)
        if kq < 3:
            e.I(f"s_branch LC_rd"); ends.append(e.save()); e.restore(st); e.label(f"LC_r{kq+1}")
    for x in ends: e.merge(x)
    e.label("LC_rd")
    e.I("s_barrier")
    e.I("s_mul_i32 s62, s49, 5\ns_add_u32 s62, s62, s55\ns_mul_i32 s62, s62, 3072\nv_add_u32 v3, s62, v3")
    for c in range(3):
        for src in range(3): e.I(f"ds_read_b128 {vr(ACC+(c*3+src)*4,4)}, v3 offset:{(c*3+src)*1024}")
    e.I(f"""
s_mov_b32 s63, 0xffff0000
s_mov_b32 s64, 0x3f803f80
s_cmp_eq_u32 s51, 0
s_cselect_b32 s65, s54, {hx(OOB)}
s_cselect_b32 s66, -1, 0
v_mov_b32 v10, 0
v_mov_b32 v11, 0
v_lshlrev_b32 v9, 7, v9
s_lshl_b32 s67, s31, 1
s_add_u32 s67, s67, s51
s_lshl_b32 s68, s67, 3
s_add_u32 s68, s68, {hx(OFF_ST)}
s_lshr_b32 s69, s30, 1
s_lshl_b32 s69, s69, 10
s_and_b32 s67, s30, 1
s_lshl_b32 s67, s67, 3
s_add_u32 s67, s67, s31
s_lshl_b32 s67, s67, 2
s_add_u32 s69, s69, s67
s_add_u32 s69, s69, {hx(OFF_FC)}
""")
    OUT = 72
    for c in range(3):
        o = OWN + 4*c; t = 68; r = resr[c]
        e.I(f"v_lshlrev_b32 v{t}, 16, v{r}\nv_and_b32 v{t+1}, s63, v{r}\nv_lshlrev_b32 v{t+2}, 16, v{r+1}\nv_and_b32 v{t+3}, s63, v{r+1}")
        for k in (0, 2): e.I(f"v_pk_add_f32 {vr(o+k,2)}, {vr(o+k,2)}, {vr(t+k,2)}")
        for src in range(3):
            for k in (0, 2): e.I(f"v_pk_add_f32 {vr(o+k,2)}, {vr(o+k,2)}, {vr(ACC+(c*3+src)*4+k,2)}")
        e.I(f"v_cvt_pk_bf16_f32 v{OUT+2*c}, v{o}, v{o+1}\nv_cvt_pk_bf16_f32 v{OUT+2*c+1}, v{o+2}, v{o+3}")
        e.I(f"buffer_store_dwordx2 {vr(OUT+2*c,2)}, v6, {SWR}, s{54 if c < 2 else 65} offen offset:{c*1024} sc1")
    e.I(f"v_and_b32 v{OUT+6}, s66, v{OUT+4}\nv_and_b32 v{OUT+7}, s66, v{OUT+5}")
    for k in (0, 1, 2, 3, 6, 7): e.I(f"v_dot2c_f32_bf16 v10, s64, v{OUT+k}\nv_dot2c_f32_bf16 v11, v{OUT+k}, v{OUT+k}")
    for sw in ("v_permlane32_swap_b32", "v_permlane16_swap_b32"):
        e.I(f"v_mov_b32 v12, v10\nv_mov_b32 v13, v11\n{sw} v10, v12\n{sw} v11, v13\nv_add_f32 v10, v10, v12\nv_add_f32 v11, v11, v13")
    e.I("s_mov_b64 exec, 0xffff")
    e.I(f"buffer_store_dwordx2 v[10:11], v9, {SWR}, s68 offen sc1", tag="hst")
    e.I("s_mov_b64 exec, -1")
    S.stamp(3)
    e.I(f"""
v_mov_b32 v12, 0
v_mov_b32 v13, s{TAG}
s_lshl_b32 s70, s{XCD}, 1
s_and_b32 s71, s{IDX}, 1
s_add_u32 s70, s70, s71
s_lshr_b32 s71, s{IDX}, 1
s_and_b32 s71, s71, 1
s_lshr_b32 s72, s{IDX}, 2
s_mul_i32 s73, s{WV}, 7
s_cmp_eq_u32 s{WV}, 7
s_cselect_b32 s74, 1, 0
s_sub_u32 s73, s73, s74
s_mul_i32 s74, s72, {5*54}
s_add_u32 s74, s74, s73
s_lshl_b32 s74, s74, 10
s_add_u32 s74, s74, {hx(OFF_WD)}
s_cmp_ge_u32 s{WV}, 6
s_cselect_b32 s75, {hx(OOB)}, 0
""")
    e.wait_tag("hst")
    e.I("s_barrier")
    S.stamp(4)
    def dsrc(n):
        s, ct = divmod(n, 5)
        return f"s_add_u32 s60, s74, {hx(ct*54*1024 + s*1024)}\n" + ("s_add_u32 s60, s60, s75\n" if s == 6 else "")
    def dload(n): e.I(dsrc(n) + f"buffer_load_dwordx4 {vr(WR+4*n,4)}, v2, {SWR}, s60 offen sc1")
    RS = 41 * 1024; WDL = 48 * 1024; NDIR = 19
    e.I(f"s_cmp_eq_u32 s{WV}, 7\ns_cbranch_scc1 LD_svc")
    stD = e.save()

    for n in wq_late[:1] + wq + wq_late[1:]: wload(n)
    e.I(f"""
v_and_b32 v5, 31, v1
v_lshrrev_b32 v6, 5, v1
v_lshlrev_b32 v4, 2, v5
v_bfe_u32 v7, v1, 4, 1
v_mul_u32_u24 v7, {54*1024}, v7
v_lshl_add_u32 v7, v6, 8, v7
v_and_b32 v8, 15, v1
v_lshl_add_u32 v7, v8, 4, v7
s_mul_i32 s44, s56, {8*54*1024}
s_lshl_b32 s45, s58, 9
s_add_u32 s44, s44, s45
s_add_u32 s44, s44, {hx(OFF_HH)}
s_cmp_lt_u32 s58, 108
s_cselect_b32 s44, s44, {hx(OOB)}
s_lshl_b32 s47, s{WV}, 14
s_add_u32 s47, s47, {hx(WDL)}
v_add_u32 v3, s47, v2
""")
    DA = 16; da = lambda rt: DA + (rt & 1) * 16
    HF = 48; NHF = 6
    seq = [(rt, ks) for rt in range(4) for ks in range(41)]
    def rd(i):
        rt, ks = seq[i]
        return f"ds_read_b128 {vr(HF + (i % NHF)*4, 4)}, v2 offset:{ks*1024}"
    def mf(i):
        rt, ks = seq[i]
        c = "0" if ks == 0 else vr(da(rt), 16)
        return f"v_mfma_f32_32x32x16_bf16 {vr(da(rt),16)}, {vr(WR+4*ks,4)}, {vr(HF + (i % NHF)*4, 4)}, {c}"
    def epi(rt):
        a = da(rt); o = 72; out = [f"ds_read_b32 v10, v4 offset:{RS + rt*128}", f"v_mul_f32 v11, {hx(f2u(-LOG2E))}, v10"]
        for k in range(8): out.append(f"v_mul_f32 v{a+k}, v11, v{a+k}")
        for k in range(8): out += [f"v_exp_f32 v{a+k}, v{a+k}", f"v_mul_f32 v{a+8+k}, v10, v{a+8+k}"]
        for k in range(8): out.append(f"v_add_f32 v{a+k}, 1.0, v{a+k}")
        for k in range(8): out.append(f"v_rcp_f32 v{a+k}, v{a+k}")
        for k in range(8): out.append(f"v_mul_f32 v{a+8+k}, v{a+k}, v{a+8+k}")
        for k in range(4): out.append(f"v_cvt_pk_bf16_f32 v{o+k}, v{a+8+2*k}, v{a+9+2*k}")
        out.append((f"s_add_u32 s46, s44, {hx(rt*2*54*1024)}\nbuffer_store_dwordx4 {vr(o,4)}, v7, {SWR}, s46 offen sc1", ("hh", rt)))
        return out
    def ddma(n):
        e.I(dsrc(NDIR + n) + f"s_add_u32 m0, s47, {n*1024}\nbuffer_load_dwordx4 v2, {SWR}, s60 offen sc1 lds", tag="wdl")
    LOOK = 4; N = len(seq); fill = []
    for i in range(-LOOK, N):
        j = i + LOOK
        if j < N:
            if seq[j][1] in (0, 10, 20, 30):
                if seq[j][1] == 0 and seq[j][0] >= 2: e.wait_tag(("hh", seq[j][0] - 2))
                if seq[j] == (3, 30): e.wait_tag(("hh", 2))
                e.I("s_barrier")
                if j == 0: S.stamp(5)
                if j == 41: S.stamp(6)
                if j == 123: S.stamp(7)
            e.I(rd(j))
        if i >= 0:
            e.I(mf(i))
            rt, ks = seq[i]
            if ks == 1 and rt > 0: fill += epi(rt - 1)
            if rt in (1, 2) and ks % 5 == 2: ddma((rt - 1) * 8 + ks // 5)
            if rt == 3 and ks % 2 == 1 and ks // 2 < NDIR: dload(ks // 2)
            for _ in range(3):
                if fill:
                    x = fill.pop(0)
                    if isinstance(x, tuple): e.I(x[0], tag=x[1])
                    else: e.I(x)
    assert not fill
    e.wait_tag("wdl")
    for n in range(8): e.I(f"ds_read_b128 {vr(WR+4*(NDIR+n),4)}, v3 offset:{n*1024}")
    for x in epi(3):
        if isinstance(x, tuple): e.I(x[0], tag=x[1])
        else: e.I(x)
    for n in range(8, 16): e.I(f"ds_read_b128 {vr(WR+4*(NDIR+n),4)}, v3 offset:{n*1024}")
    e.wait_lg(0)
    e.wait_vm(0)
    e.I("s_branch LE_start")
    stE = e.save()

    e.restore(stD)
    e.label("LD_svc")
    e.I(f"""
s_setprio 3
v_lshlrev_b32 v3, 2, v1
v_and_b32 v5, 31, v1
v_lshrrev_b32 v6, 5, v1
v_lshlrev_b32 v7, 7, v5
v_lshl_add_u32 v7, v6, 6, v7
v_lshlrev_b32 v4, 2, v5
s_lshl_b32 s44, s56, 2
s_lshr_b32 s45, s{XCD}, 1
s_add_u32 s44, s44, s45
s_lshl_b32 s44, s44, 8
s_add_u32 s44, s44, {hx(OFF_FC)}
s_lshl_b32 s77, s56, 8
s_lshl_b32 s78, s57, 2
s_add_u32 s77, s77, s78
s_add_u32 s77, s77, {hx(OFF_FD)}
s_lshl_b32 s78, s70, 8
s_add_u32 s78, s78, {hx(OFF_FD)}
v_lshlrev_b32 v8, 8, v1
s_mul_i32 s45, s56, {4*40960}
s_add_u32 s45, s45, {hx(OFF_H)}
s_lshl_b32 s46, s56, 14
s_add_u32 s46, s46, {hx(OFF_ST)}
s_mov_b32 s47, {hx(f2u(1.0/640))}
""")
    def hdma(c):
        rt, q = divmod(c, 4)
        for ks in range(10*q, 10*q + 10):
            if ks % 4 == 0 or ks == 10*q:
                b = ks // 4 * 4
                e.I(f"s_mov_b32 m0, {hx(b*1024)}\ns_add_u32 s48, s45, {hx(rt*40960 + b*1024)}")
            e.I(f"buffer_load_dwordx4 v2, {SWR}, s48 offen offset:{(ks%4)*1024} sc1 lds", tag=("h", c))
    def stload(rt):
        e.I(f"s_add_u32 s49, s46, {hx(rt*4096)}")
        for k in range(4): e.I(f"buffer_load_dwordx4 {vr(16+4*k,4)}, v7, {SWR}, s49 offen offset:{k*16} sc1")
    def stcalc(rt):
        for k in range(8): e.I(f"v_add_f32 v{16+k}, v{16+k}, v{24+k}")
        for k in range(4): e.I(f"v_add_f32 v{16+k}, v{16+k}, v{20+k}")
        e.I(f"""
v_add_f32 v16, v16, v18
v_add_f32 v17, v17, v19
v_mov_b32 v18, v16
v_mov_b32 v19, v17
v_permlane32_swap_b32 v16, v18
v_permlane32_swap_b32 v17, v19
v_add_f32 v16, v16, v18
v_add_f32 v17, v17, v19
v_mul_f32 v16, s47, v16
v_mul_f32 v17, s47, v17
v_fma_f32 v17, -v16, v16, v17
v_max_f32 v17, 0, v17
v_add_f32 v17, {hx(f2u(EPS))}, v17
v_rsq_f32 v17, v17
v_cvt_pk_bf16_f32 v20, -v16, -v16
v_mov_b32 v21, v20
v_mov_b32 v22, v20
v_mov_b32 v23, v20
ds_write_b128 v2, v[20:23] offset:{40*1024}
ds_write_b32 v4, v17 offset:{RS + rt*128}
""")
    f.setflags(8, 13, "s69", "15")
    f.poll(3, "s44", 9, "0xff")
    e.st.vm = []
    S.stamp(5)
    hdma(0); hdma(1); stload(0)
    nd = 0
    for c in range(16):
        rt, q = divmod(c, 4)
        e.wait_tag(("h", c)); e.wait_lg(0)
        e.I("s_barrier")
        if c == 2: f.check_issue(3, "s44", 9)
        if c == 5: f.check_finish(3, "s44", 9, "0xff00")
        if c == 8: f.setflag(12, 13, "s77", 0)
        if c == 12: f.setflag(12, 13, "s77", 64)
        if c == 15: f.setflag(12, 13, "s77", 128)
        if c + 2 < 16: hdma(c + 2)
        if q == 1: stcalc(rt)
        if q == 2 and rt < 3: stload(rt + 1)
        if c >= 4:
            for _ in range(3):
                if nd < 35: dload(nd); nd += 1
    assert nd == 35
    e.I("s_mov_b32 s48, -1\ns_mov_b32 s49, 0")
    f.poll(3, "s78", 9, "s[48:49]")
    e.st.vm = []
    e.merge(stE)

    e.label("LE_start")
    f.newstamp(3, 16); S = f.S
    e.I(f"""
v_and_b32 v7, 15, v1
v_lshrrev_b32 v8, 4, v1
s_lshl_b32 s52, s70, 3
s_add_u32 s52, s52, s71
s_mul_i32 s53, s52, {54*1024}
s_lshl_b32 s54, s73, 10
s_add_u32 s53, s53, s54
s_add_u32 s53, s53, {hx(OFF_HH)}
""")
    AF = 16; af = lambda tt, s: AF + (tt & 1) * 28 + s * 4
    EA = 72; RT = 232
    def aload(tt):
        for s in range(7):
            if s % 4 == 0: e.I(f"s_add_u32 s56, s53, {hx(tt*2*54*1024 + s*1024)}")
            if s == 6: e.I("s_add_u32 s56, s56, s75")
            e.I(f"buffer_load_dwordx4 {vr(af(tt,s),4)}, v2, {SWR}, s56 offen offset:{(s%4)*1024} sc1")
    e.I("s_barrier")
    def svc(fn):
        lb = f.lab("Esvc"); stp = e.save()
        e.I(f"s_cmp_lg_u32 s{WV}, 7\ns_cbranch_scc1 {lb}")
        fn(); e.label(lb); e.st.vm = stp.vm
    svc(lambda: f.setflag(12, 13, "s77", 192))
    S.stamp(1)
    aload(0); aload(1)
    e.I(f"""
s_lshl_b32 s55, s{WV}, 10
v_add_u32 v4, s55, v2
v_add_u32 v11, 40960, v4
v_mul_u32_u24 v5, 1280, v7
v_lshl_add_u32 v5, v8, 3, v5
v_lshlrev_b32 v6, 4, v7
v_lshrrev_b32 v10, 1, v8
v_lshl_add_u32 v6, v10, 9, v6
v_and_b32 v10, 1, v8
v_lshl_add_u32 v6, v10, 3, v6
s_mov_b32 s63, 0xffff0000
""")
    def owner_setup(tt):
        e.I(f"""
s_sub_u32 s57, s{WV}, {5*tt}
s_and_b32 s57, s57, 7
s_lshl_b32 s58, s70, 2
s_add_u32 s58, s58, {tt}
s_mul_i32 s59, s58, 40
s_mul_i32 s60, s72, 5
s_add_u32 s60, s60, s57
s_add_u32 s59, s59, s60
s_lshl_b32 s59, s59, 10
s_lshl_b32 s61, s71, 8
s_add_u32 s59, s59, s61
s_add_u32 s59, s59, {hx(OFF_H)}
s_lshl_b32 s58, s58, 1
s_add_u32 s58, s58, s71
s_mul_i32 s58, s58, 20480
s_lshl_b32 s60, s60, 5
s_add_u32 s58, s58, s60
s_cmp_lt_u32 s57, 5
s_cselect_b32 s59, s59, {hx(OOB)}
s_cselect_b32 s{64+tt}, s58, {hx(OOB)}
s_lshl_b32 s57, s57, 13
s_add_u32 s{36+tt}, s57, {(tt & 1)*40960}
""")
        e.I(f"buffer_load_dwordx2 {vr(12+2*(tt&1),2)}, v6, {SWR}, s59 offen sc1", tag=("res", tt))
    def reduce(tt):
        lab = f"LE_nr{tt}"
        e.wait_tag(("res", tt))
        e.I(f"s_cmp_eq_u32 s{64+tt}, {hx(OOB)}\ns_cbranch_scc1 {lab}")
        st = e.save()
        r = 12 + 2*(tt & 1)
        e.I(f"v_add_u32 v9, s{36+tt}, v2")
        for h in range(2):
            for k in range(4): e.I(f"ds_read_b128 {vr(RT+4*k,4)}, v9 offset:{(4*h+k)*1024}")
            if h == 0:
                o = RT + 16
                e.I(f"v_lshlrev_b32 v{o}, 16, v{r}\nv_and_b32 v{o+1}, s63, v{r}\nv_lshlrev_b32 v{o+2}, 16, v{r+1}\nv_and_b32 v{o+3}, s63, v{r+1}")
            for k in range(4):
                for q in range(4): e.I(f"v_add_f32 v{RT+16+q}, v{RT+16+q}, v{RT+4*k+q}")
        e.I(f"v_cvt_pk_bf16_f32 v{RT+20}, v{RT+16}, v{RT+17}\nv_cvt_pk_bf16_f32 v{RT+21}, v{RT+18}, v{RT+19}")
        e.merge(st)
        e.label(lab)
        e.I(f"buffer_store_dwordx2 {vr(RT+20,2)}, v5, s[{SO}:{SO+3}], s{64+tt} offen")
    for tt in range(4):
        owner_setup(tt)
        for s in range(7):
            for ct in range(5):
                c = "0" if s == 0 else vr(EA+4*ct, 4)
                e.I(f"v_mfma_f32_16x16x32_bf16 {vr(EA+4*ct,4)}, {vr(WR+4*(s*5+ct),4)}, {vr(af(tt,s),4)}, {c}")
            if s == 1 and tt > 0: reduce(tt - 1)
        for ct in range(5): e.I(f"ds_write_b128 v{11 if tt&1 else 4}, {vr(EA+4*ct,4)} offset:{ct*8192}")
        if tt < 2:
            def pl():
                e.I(f"s_mov_b32 s48, 0\ns_mov_b32 s49, {'0xffff' if tt == 0 else '0xffff0000'}")
                f.poll(3, "s78", 10, "s[48:49]")
            svc(pl)
        e.wait_lg(0)
        e.I("s_barrier")
        if tt < 2: aload(tt + 2)
        S.stamp(2 + tt)
    reduce(3)
    S.stamp(6)
```

```python
from common import *

def gen_ka(e, diag=False, name="ka_kernel", rot=True, ldflag="", stflag="", abl=()):
    kernel_begin(e, name)
    S = Stamper(e, diag, 0)
    S.stamp(0)
    if diag: e.I('s_memtime s[92:93]')
    RSTD = 0x20000
    e.I(f"""
s_cmp_ge_u32 s2, 256
s_cbranch_scc1 L{name}_end
s_load_dwordx4 s[8:11], s[0:1], 0
s_load_dwordx2 s[12:13], s[0:1], 72
""")
    code_touch(e, name, 2, 127, 512)
    e.I(f"""
s_and_b32 s31, s2, 7
s_lshr_b32 s32, s2, 3
s_lshr_b32 s28, s31, 1
s_lshl_b32 s28, s28, 2
s_and_b32 s33, s32, 3
s_add_u32 s28, s28, s33
s_and_b32 s29, s31, 1
s_lshl_b32 s29, s29, 3
s_lshr_b32 s34, s32, 2
s_add_u32 s29, s29, s34
s_cmp_eq_u32 s29, 15
s_cbranch_scc1 L{name}_end
v_lshrrev_b32 v4, 6, v0
v_and_b32 v1, 63, v0
v_readfirstlane_b32 s30, v4
""")
    if rot == 2:
        e.I("s_xor_b32 s40, s33, s34\ns_and_b32 s40, s40, 1\ns_mul_i32 s40, s40, 5")
    elif rot == 3:
        e.I("s_add_u32 s40, s33, s34\ns_and_b32 s40, s40, 3\ns_mul_i32 s40, s40, 5\ns_lshr_b32 s40, s40, 1")
    elif rot == 4:
        e.I("s_xor_b32 s40, s33, s34\ns_and_b32 s40, s40, 1\ns_lshl_b32 s40, s40, 1")
    elif rot == 5:
        e.I("s_mov_b32 s40, s31")
    elif rot:
        e.I("""
s_mul_i32 s40, s33, 3
s_add_u32 s40, s40, s34
s_cmp_ge_u32 s40, 10
s_cselect_b32 s41, 10, 0
s_sub_u32 s40, s40, s41
""")
    else:
        e.I("s_mov_b32 s40, 0")
    e.I(f"s_cmp_ge_u32 s30, 4\ns_cbranch_scc1 L{name}_helper")
    st0 = e.save()

    e.I("""
s_lshr_b32 s35, s30, 1
s_and_b32 s36, s30, 1
v_and_b32 v112, 31, v1
v_lshrrev_b32 v113, 5, v1
v_bfe_u32 v114, v1, 1, 3
s_lshl_b32 s37, s35, 13
v_lshlrev_b32 v115, 7, v112
v_add_u32 v115, s37, v115
""")
    for j in range(4):
        e.I(f"v_add_u32 v116, {2*j}, v113\nv_xor_b32 v116, v116, v114\nv_lshl_add_u32 v{2+j}, v116, 4, v115")
    e.I("""
v_lshlrev_b32 v6, 11, v113
v_bfe_u32 v116, v1, 2, 2
v_lshl_add_u32 v6, v116, 6, v6
v_bfe_u32 v116, v1, 4, 1
v_lshl_add_u32 v6, v116, 5, v6
v_and_b32 v116, 1, v1
v_lshl_add_u32 v6, v116, 4, v6
v_bfe_u32 v116, v1, 1, 1
v_lshl_add_u32 v6, v116, 3, v6
s_lshl_b32 s37, s36, 9
s_add_u32 s37, s37, 16384
v_add_u32 v6, s37, v6
""")
    for j in range(5): e.I(f"v_add_u32 v{7+j}, 0x10000, v{2+j}")
    e.I(f"""
v_lshlrev_b32 v12, 15, v113
v_lshl_add_u32 v12, v112, 4, v12
s_lshl_b32 s37, s35, 8
v_lshlrev_b32 v13, 2, v112
v_add_u32 v13, s37, v13
v_add_u32 v13, {hx(RSTD)}, v13
s_lshl_b32 s38, s29, 19
s_lshl_b32 s37, s36, 18
s_add_u32 s38, s38, s37
s_lshl_b32 s37, s28, 11
s_add_u32 s38, s38, s37
s_lshl_b32 s37, s35, 10
s_add_u32 s38, s38, s37
s_add_u32 s38, s38, {hx(OFF_U)}
""")
    srd(e, 24, 12, WS_END)
    acc = lambda ci, ri: 16 + (ci * 2 + ri) * 16
    xf = lambda b, ri: 80 + b * 8 + ri * 4
    wf = lambda b, ci: 96 + b * 8 + ci * 4
    def reads(step):
        s, j = divmod(step, 4); b = step & 1; so = (s & 1) * 32768; hi = 5 * ((s >> 1) & 1)
        def w(ci): return [f"ds_read_b64_tr_b16 {vr(wf(b,ci)+2*rd,2)}, v{6+hi} offset:{so + j*4096 + rd*1024 + ci*256}" for rd in range(2)]
        def x(ri): return [f"ds_read_b128 {vr(xf(b,ri),4)}, v{2+j+hi} offset:{so + ri*4096}"]
        return w(0) + x(0) + x(1) + w(1)
    def mfmas(step):
        b = step & 1; out = []
        for (ci, ri) in ((0,0),(0,1),(1,0),(1,1)):
            c = "0" if step == 0 else vr(acc(ci,ri),16)
            out.append(f"v_mfma_f32_32x32x16_bf16 {vr(acc(ci,ri),16)}, {vr(wf(b,ci),4)}, {vr(xf(b,ri),4)}, {c}")
        return out
    S.stamp(1)
    e.I("s_barrier")
    S.stamp(2)
    for r in reads(0): e.I(r)
    NST = 41
    for step in range(NST):
        nxt = step + 1
        m = mfmas(step)
        if 'nomfma' in abl and step > 0: m = ['s_nop 0']*4
        rd = reads(nxt) if nxt < NST else []
        if 'noread' in abl: rd = []
        if nxt < NST and nxt % 4 == 0:
            e.wait_lg(0)
            e.I("s_barrier")
        if nxt % 4 == 0:
            for r in rd[:3]: e.I(r)
            e.I(m[0])
            for r in rd[3:]: e.I(r)
            for x in m[1:]: e.I(x)
        else:
            for k in range(4):
                e.I(m[k])
                for r in rd[2*k:2*k+2]: e.I(r)
        if nxt == NST - 1:
            e.I("ds_read_b32 v14, v13\nds_read_b32 v15, v13 offset:128")
    S.stamp(3)
    for ci in range(2):
        for ri in range(2):
            a = acc(ci, ri)
            for k in range(16): e.I(f"v_mul_f32 v{a+k}, v{14+ri}, v{a+k}")
            for i in range(2):
                o = 80 + ((ci*2+ri)*2 + i) * 4
                for k in range(4): e.I(f"v_cvt_pk_bf16_f32 v{o+k}, v{a+8*i+2*k}, v{a+8*i+2*k+1}")
                e.I(f"s_add_u32 s39, s38, {hx((4*ci + 2*i)*32768 + ri*512)}")
                e.I(f"buffer_store_dwordx4 {vr(o,4)}, v12, s[24:27], s39 offen {stflag}")
    S.stamp(4)
    if diag:
        e.wait_vm(0); e.I('s_memtime s[94:95]'); S.stamp(5)
        S.dump(30, 12, 16)
    e.I("s_endpgm")

    e.restore(st0)
    e.label(f"L{name}_helper")
    e.I("""
s_sub_u32 s35, s30, 4
v_lshrrev_b32 v13, 3, v1
v_and_b32 v14, 7, v1
v_lshrrev_b32 v60, 4, v1
s_lshl_b32 s36, s28, 7
s_lshl_b32 s37, s35, 5
s_add_u32 s36, s36, s37
v_add_u32 v15, s36, v13
v_mul_u32_u24 v15, 1280, v15
v_xor_b32 v62, v14, v60
v_xor_b32 v63, 4, v62
v_lshl_add_u32 v2, v62, 4, v15
v_lshl_add_u32 v3, v63, 4, v15
v_add_u32 v3, 10240, v3
v_add_u32 v4, 20480, v2
v_add_u32 v5, 20480, v3
""")
    e.I("""
v_bfe_u32 v61, v1, 2, 2
s_lshl_b32 s36, s35, 4
v_add_u32 v15, s36, v61
v_mul_u32_u24 v15, 3840, v15
v_lshl_add_u32 v15, v60, 6, v15
v_and_b32 v62, 3, v1
v_lshl_add_u32 v15, v62, 4, v15
s_lshl_b32 s36, s29, 8
v_add_u32 v6, s36, v15
v_add_u32 v7, 15360, v6
v_add_u32 v8, 30720, v6
v_add_u32 v9, 46080, v6
s_lshl_b32 s44, s35, 12
""")
    srd(e, 16, 8, 2048 * 1280)
    srd(e, 20, 10, 640 * 3840)
    def issue(n):
        so = (n & 3) * 32768
        out = []
        for q in range(4):
            out.append((f"s_add_u32 m0, s44, {hx(so + 16384 + q*1024)}\nbuffer_load_dwordx4 v{6+q}, s[20:23], s43 offen {ldflag} lds", ("w", n, q)))
            out.append((f"s_add_u32 m0, s44, {hx(so + q*1024)}\nbuffer_load_dwordx4 v{2+q}, s[16:19], s42 offen {ldflag} lds", ("x", n, q)))
        out[-1] = (out[-1][0] + "\ns_add_u32 s40, s40, 1\ns_cmp_eq_u32 s40, 10\ns_cselect_b32 s40, 0, s40", out[-1][1])
        out[0] = ("s_lshl_b32 s42, s40, 7\ns_mul_i32 s43, s40, 245760\n" + out[0][0], out[0][1])
        return out
    for n in range(2):
        for (x, t) in issue(n): e.I(x, tag=t)
    e.I("""
v_lshlrev_b32 v10, 4, v1
v_add_u32 v10, s44, v10
v_add_u32 v11, 0x10000, v10
v_lshlrev_b32 v58, 8, v61
v_lshl_add_u32 v58, v62, 4, v58
v_lshl_add_u32 v12, v60, 6, v58
s_add_u32 s36, s44, 16384
v_add_u32 v12, s36, v12
v_add_u32 v59, 0x10000, v12
s_mov_b32 s45, 0xffff0000
v_and_b32 v62, 1, v1
v_lshlrev_b32 v62, 4, v62
v_mov_b32 v63, 0x3f80
v_lshlrev_b32 v63, v62, v63
v_bfe_u32 v62, v1, 1, 2
""")
    for k in range(4):
        e.I(f"v_cmp_eq_u32 vcc, {k}, v62\nv_cndmask_b32 v{28+k}, 0, v63, vcc")
    for k in range(16, 28): e.I(f"v_mov_b32 v{k}, 0")
    for (x, t) in issue(2): e.I(x, tag=t)
    S.stamp(1)
    def sub_read(b):
        n, q = divmod(b, 4); so = (n & 1) * 32768 + q * 1024; hi = (n >> 1) & 1; r = 32 + (b & 1) * 8
        e.wait_tag(("x", n, q))
        e.I(f"ds_read_b128 {vr(r,4)}, v{11 if hi else 10} offset:{so}")
        e.I(f"ds_read_b128 {vr(r+4,4)}, v{59 if hi else 12} offset:{so}")
    def sub(b):
        n, q = divmod(b, 4); r = 32 + (b & 1) * 8
        out = []
        for k in range(4):
            out += [f"v_lshlrev_b32 v{48+2*k}, 16, v{r+k}", f"v_and_b32 v{49+2*k}, s45, v{r+k}"]
        out.append(f"v_mfma_f32_16x16x32_bf16 v[24:27], v[28:31], {vr(r+4,4)}, v[24:27]")
        out.append(("read", b + 2))
        for k in range(8):
            out += [f"v_add_f32 v{16+q}, v{16+q}, v{48+k}", f"v_fmac_f32 v{20+q}, v{48+k}, v{48+k}"]
        return out
    for n in range(10):
        e.wait_tag(("x", n, 3))
        e.I("s_barrier")
        if n == 0:
            S.stamp(2)
            if 'nostats' not in abl: sub_read(0); sub_read(1)
        if n == 9: break
        ld = issue(n + 3) if n + 3 < 10 else []
        va = []
        for b in range(-(-40*n//9), -(-40*(n+1)//9)): va += sub(b)
        if 'nostats' in abl: va = []
        li = 0
        for k, x in enumerate(va):
            if k % 11 == 0 and li < len(ld): e.I(ld[li][0], tag=ld[li][1]); li += 1
            if isinstance(x, tuple):
                if x[1] < 40: sub_read(x[1])
            else: e.I(x)
        while li < len(ld): e.I(ld[li][0], tag=ld[li][1]); li += 1
    S.stamp(3)
    dp = "row_mask:0xf bank_mask:0xf"
    for ctl in ("quad_perm:[1,0,3,2]", "quad_perm:[2,3,0,1]", "row_half_mirror"):
        for k in range(16, 24): e.I(f"v_add_f32_dpp v{k}, v{k}, v{k} {ctl} {dp}")
    e.I(f"""
s_mov_b32 s46, {hx(f2u(1.0/640))}
s_mov_b32 s47, {hx(f2u(EPS))}
s_cmp_lt_u32 s29, 5
s_cselect_b32 s48, {hx(f2u(QSCALE))}, 1.0
s_lshl_b32 s36, s35, 7
s_add_u32 s36, s36, {hx(RSTD)}
v_lshlrev_b32 v13, 2, v13
v_add_u32 v13, s36, v13
v_cmp_gt_u32 s[50:51], 32, v1
""")
    steps = ["v_mul_f32 v{m}, s46, v{m}", "v_mul_f32 v{s}, s46, v{s}", "v_fma_f32 v{s}, -v{m}, v{m}, v{s}",
             "v_cvt_pk_bf16_f32 v{o}, -v{m}, -v{m}", "v_max_f32 v{s}, 0, v{s}", "v_mov_b32 v{o1}, v{o}", "v_add_f32 v{s}, s47, v{s}",
             "v_mov_b32 v{o2}, v{o}", "v_rsq_f32 v{s}, v{s}", "v_mov_b32 v{o3}, v{o}", "ds_write_b128 v11, v[{o}:{o3}] offset:{xo}", "v_mul_f32 v{s}, s48, v{s}",
             "ds_write_b32 v13, v{s} offset:{ro}"]
    for stp in steps:
        for q in range(4):
            o = 32 + 4*q
            e.I(stp.format(m=16+q, s=20+q, o=o, o1=o+1, o2=o+2, o3=o+3, xo=q*1024, ro=q*32))
    steps = ["v_cvt_pk_bf16_f32 v{h}, v{a}, v{b}", "v_lshlrev_b32 v{t}, 16, v{h}", "v_and_b32 v{u}, s45, v{h}", "v_sub_f32 v{t}, v{a}, v{t}",
             "v_sub_f32 v{u}, v{b}, v{u}", "v_cvt_pk_bf16_f32 v{t}, v{t}, v{u}", "v_cndmask_b32 v{h}, v{t}, v{h}, s[50:51]"]
    for stp in steps:
        for k in range(2): e.I(stp.format(h=48+k, a=24+2*k, b=25+2*k, t=52+2*k, u=53+2*k))
    e.I("""
s_lshl_b32 s36, s35, 10
s_add_u32 s36, s36, 0x14000
v_lshrrev_b32 v56, 5, v1
v_lshl_add_u32 v12, v56, 6, v58
v_and_b32 v56, 1, v60
v_lshl_add_u32 v12, v56, 3, v12
v_add_u32 v12, s36, v12
v_mov_b32 v50, 0
v_mov_b32 v51, 0
ds_write_b64 v12, v[48:49]
ds_write_b64 v12, v[50:51] offset:128
""")
    e.wait_lg(0)
    e.I("s_barrier")
    S.stamp(4)
    if diag:
        e.I('s_memtime s[94:95]'); S.stamp(5)
        S.dump(30, 12, 16)
    e.label(f"L{name}_end")
    e.I("s_endpgm")
    e.label(f"L{name}_endcode")
    return dict(name=name, grid=256, block=512, lds=RSTD + 512, kd=kd(name, 128))
```

```python
from common import *

OFF_FC = 15 * MB
OFF_FD = 15 * MB + 65536
SPIN = 50000

def poll(e, name, vaddr, soff, vtmp, cond_exec, stag, scnt):
    e.wait_vm(0)
    e.I(f"s_mov_b64 exec, {cond_exec}\ns_mov_b32 s{scnt}, 0")
    e.label(name)
    e.I(f"buffer_load_dword v{vtmp}, v{vaddr}, s[24:27], {soff} offen sc0 sc1")
    e.I(f"s_add_u32 s{scnt}, s{scnt}, 1\ns_cmp_gt_u32 s{scnt}, {SPIN}\ns_cbranch_scc1 {name}x")
    e.I(f"v_cmp_ne_u32 vcc, s{stag}, v{vtmp}")
    e.I(f"s_cbranch_vccnz {name}")
    e.label(name + "x")
    e.wait_vm(0) if e.st.vm else e.raw("  s_waitcnt vmcnt(0)")
    e.I("s_mov_b64 exec, -1")

def get_epoch(e, name, vt, stag, scnt):
    e.wait_vm(0)
    e.I(f"v_mov_b32 v{vt}, 0\ns_mov_b32 s{scnt}, 0")
    e.label(name)
    e.I(f"global_load_dword v{vt+1}, v{vt}, s[14:15] sc0 sc1")
    e.I(f"v_readfirstlane_b32 s{stag}, v{vt+1}")
    e.I(f"s_add_u32 s{scnt}, s{scnt}, 1\ns_cmp_gt_u32 s{scnt}, {SPIN}\ns_cbranch_scc1 {name}x")
    e.I(f"s_cmp_eq_u32 s{stag}, 0\ns_cbranch_scc1 {name}")
    e.label(name + "x")

def gen_cde(e, diag=False, name="kcde_kernel", abl=()):
    kernel_begin(e, name)
    S = Stamper(e, diag, 2)
    S.stamp(0)
    TAG = 79
    e.I(f"""
s_cmp_ge_u32 s2, 256
s_cbranch_scc1 L{name}_end
s_load_dwordx2 s[8:9], s[0:1], 0
s_load_dwordx2 s[10:11], s[0:1], 56
s_load_dwordx2 s[14:15], s[0:1], 64
s_load_dwordx2 s[12:13], s[0:1], 72
s_memrealtime s[76:77]
""")
    code_touch(e, name, 2, 15, 512)
    e.I(f"""
s_and_b32 s31, s2, 7
s_lshr_b32 s32, s2, 3
v_lshrrev_b32 v4, 6, v0
v_and_b32 v1, 63, v0
v_readfirstlane_b32 s30, v4
v_lshlrev_b32 v2, 4, v1
s_lshl_b32 s28, s31, 2
s_and_b32 s33, s32, 3
s_add_u32 s28, s28, s33
s_lshr_b32 s29, s32, 2
s_and_b32 s34, s30, 3
s_lshr_b32 s35, s30, 2
""")
    e.I(f"""
s_lshl_b32 s36, s28, 2
s_lshl_b32 s37, s35, 1
s_add_u32 s36, s36, s37
s_mul_i32 s40, s36, 20480
s_mul_i32 s38, s34, 5120
s_add_u32 s40, s40, s38
s_add_u32 s40, s40, {hx(OFF_O)}
s_add_u32 s41, s40, 20480
s_mul_i32 s43, s35, 61440
s_add_u32 s43, s43, s38
s_mul_i32 s42, s29, 102400
s_add_u32 s42, s42, s43
s_add_u32 s42, s42, {hx(OFF_WO)}
s_cmp_eq_u32 s35, 0
s_cselect_b32 s44, 0, {hx(OOB)}
""")
    srd(e, 24, 12, WS_END)
    e.I(f"""
s_or_b32 s45, s2, s30
s_cmp_lg_u32 s45, 0
s_cbranch_scc1 L{name}_noep
s_or_b32 s76, s76, 1
v_mov_b32 v5, 0
v_mov_b32 v6, s76
s_mov_b64 exec, 1
""")
    e.raw("  global_store_dword v5, v6, s[14:15] sc0 sc1")
    e.I("s_mov_b64 exec, -1")
    e.label(f"L{name}_noep")
    ACC = 16; acc = lambda t, ct: ACC + (t * 5 + ct) * 4
    OF = 56; of = lambda s, t: OF + (s * 2 + t) * 4
    CW = 232
    WR = 92
    for s in range(5):
        for c in range(3):
            if c < 2:
                e.I(f"s_add_u32 m0, s43, {hx(c*20480 + s*1024)}\ns_add_u32 s46, s42, {hx(c*20480 + s*1024)}")
            else:
                e.I(f"s_add_u32 m0, s43, {hx(c*20480 + s*1024)}\ns_add_u32 s46, s42, {hx(c*20480 + s*1024)}\ns_add_u32 s46, s46, s44")
            e.I("buffer_load_dwordx4 v2, s[24:27], s46 offen lds", tag=("cw", s))
            if c < 2:
                so = f"s{40+c} offen offset:{s*1024}" if s < 4 else f"s{47+c} offen"
                if s == 4: e.I(f"s_add_u32 s{47+c}, s{40+c}, 4096")
                e.I(f"buffer_load_dwordx4 {vr(of(s,c),4)}, v2, s[24:27], {so}")
    e.I(f"""
v_and_b32 v7, 15, v1
v_lshrrev_b32 v8, 4, v1
s_lshr_b32 s49, s34, 1
s_add_u32 s50, s36, s49
s_and_b32 s51, s34, 1
s_lshl_b32 s52, s50, 4
v_add_u32 v9, s52, v7
v_mul_u32_u24 v5, 1280, v9
v_lshl_add_u32 v5, v8, 3, v5
s_mul_i32 s53, s29, 160
s_mul_i32 s54, s51, 96
s_add_u32 s53, s53, s54
v_and_b32 v10, 31, v9
v_lshlrev_b32 v6, 4, v10
v_lshrrev_b32 v10, 1, v8
v_lshl_add_u32 v6, v10, 9, v6
v_and_b32 v10, 1, v8
v_lshl_add_u32 v6, v10, 3, v6
s_lshr_b32 s54, s50, 1
s_mul_i32 s54, s54, 40
s_mul_i32 s55, s29, 5
s_add_u32 s54, s54, s55
s_mul_i32 s55, s51, 3
s_add_u32 s54, s54, s55
s_lshl_b32 s54, s54, 10
s_add_u32 s54, s54, {hx(OFF_H)}
s_mul_i32 s38, s34, 5120
v_add_u32 v3, s38, v2
v_add_u32 v4, 0x10000, v3
""")
    srd(e, 16, 8, 2048 * 1280)
    srd(e, 20, 10, 2048 * 1280)
    RES = 252
    resr = [252, 254, 12]
    for c in range(3): e.I(f"buffer_load_dwordx2 {vr(resr[c],2)}, v5, s[16:19], s53 offen offset:{c*32}")
    e.I(f"""
s_and_b32 s56, s31, 1
s_lshl_b32 s56, s56, 3
s_and_b32 s57, s32, 7
s_add_u32 s56, s56, s57
s_lshr_b32 s57, s31, 1
s_lshl_b32 s57, s57, 2
s_lshr_b32 s58, s32, 3
s_add_u32 s57, s57, s58
s_mul_i32 s58, s57, 7
s_add_u32 s58, s58, s30
s_mul_i32 s59, s58, {41*1024}
s_add_u32 s59, s59, {hx(OFF_WGU)}
s_cmp_lt_u32 s30, 7
s_cselect_b32 s59, s59, {hx(OOB)}
""")
    def wload(n):
        pre = f"s_add_u32 s60, s59, {hx((n//4)*4096)}\n"
        return pre + f"buffer_load_dwordx4 {vr(WR+4*n,4)}, v2, s[24:27], s60 offen offset:{(n%4)*1024}"
    wq = list(range(1, 35))
    wq_late = [0] + list(range(35, 41))
    S.stamp(1)
    def cwread(s, ct):
        off = ct * 20480 + s * 1024
        e.I(f"ds_read_b128 {vr(CW + ct*4, 4)}, v{3 + (off >> 16)} offset:{off & 0xffff}")
    for s in range(5):
        if s in (0, 2, 4):
            e.wait_tag(("cw", min(s + 1, 4)))
            e.I("s_barrier")
            if s == 0: S.stamp(2)
            for ct in range(5): cwread(s, ct)
        for ct in range(5):
            for t in range(2):
                c = "0" if s == 0 else vr(acc(t,ct),4)
                e.I(f"v_mfma_f32_16x16x32_bf16 {vr(acc(t,ct),4)}, {vr(CW+ct*4,4)}, {vr(of(s,t),4)}, {c}")
            if s in (0, 2): cwread(s + 1, ct)
            if s >= 1 and ct in (1, 3): e.I(wload(wq.pop(0)))
    RB = 102400
    e.I(f"s_mul_i32 s61, s35, 30720\ns_add_u32 s61, s61, {hx(RB)}\nv_add_u32 v3, s61, v2")
    owner = [0,0,0,1,1,2,2,2,3,3]
    OWN = 56
    st = e.save(); ends = []
    for kq in range(4):
        if kq < 3: e.I(f"s_cmp_lg_u32 s34, {kq}\ns_cbranch_scc1 L{name}_r{kq+1}")
        for n in range(10):
            if owner[n] == kq: continue
            src = (kq - owner[n] - 1) & 3
            e.I(f"ds_write_b128 v3, {vr(ACC+4*n,4)} offset:{(n*3+src)*1024}")
        mine = [n for n in range(10) if owner[n] == kq]
        for k in range(4*len(mine)): e.I(f"v_mov_b32 v{OWN+k}, v{ACC+4*mine[0]+k}")
        e.wait_lg(0)
        if kq < 3:
            e.I(f"s_branch L{name}_rd"); ends.append(e.save()); e.restore(st); e.label(f"L{name}_r{kq+1}")
    for x in ends: e.merge(x)
    e.label(f"L{name}_rd")
    e.I("s_barrier")
    e.I("s_mul_i32 s62, s49, 5\ns_add_u32 s62, s62, s55\ns_mul_i32 s62, s62, 3072\nv_add_u32 v3, s62, v3")
    for c in range(3):
        for src in range(3): e.I(f"ds_read_b128 {vr(ACC+(c*3+src)*4,4)}, v3 offset:{(c*3+src)*1024}")
    e.I(f"""
s_mov_b32 s63, 0xffff0000
s_mov_b32 s64, 0x3f803f80
s_cmp_eq_u32 s51, 0
s_cselect_b32 s65, s54, {hx(OOB)}
s_cselect_b32 s66, -1, 0
v_mov_b32 v10, 0
v_mov_b32 v11, 0
""")
    OUT = 72
    for c in range(3):
        o = OWN + 4*c; t = 68; r = resr[c]
        e.I(f"v_lshlrev_b32 v{t}, 16, v{r}\nv_and_b32 v{t+1}, s63, v{r}\nv_lshlrev_b32 v{t+2}, 16, v{r+1}\nv_and_b32 v{t+3}, s63, v{r+1}")
        for k in (0, 2): e.I(f"v_pk_add_f32 {vr(o+k,2)}, {vr(o+k,2)}, {vr(t+k,2)}")
        for src in range(3):
            for k in (0, 2): e.I(f"v_pk_add_f32 {vr(o+k,2)}, {vr(o+k,2)}, {vr(ACC+(c*3+src)*4+k,2)}")
        e.I(f"v_cvt_pk_bf16_f32 v{OUT+2*c}, v{o}, v{o+1}\nv_cvt_pk_bf16_f32 v{OUT+2*c+1}, v{o+2}, v{o+3}")
        e.I(f"buffer_store_dwordx2 {vr(OUT+2*c,2)}, v6, s[24:27], s{54 if c < 2 else 65} offen offset:{c*1024} sc1")
    e.I(f"v_and_b32 v{OUT+6}, s66, v{OUT+4}\nv_and_b32 v{OUT+7}, s66, v{OUT+5}")
    for k in (0, 1, 2, 3, 6, 7): e.I(f"v_dot2c_f32_bf16 v10, s64, v{OUT+k}\nv_dot2c_f32_bf16 v11, v{OUT+k}, v{OUT+k}")
    for sw in ("v_permlane32_swap_b32", "v_permlane16_swap_b32"):
        e.I(f"v_mov_b32 v12, v10\nv_mov_b32 v13, v11\n{sw} v10, v12\n{sw} v11, v13\nv_add_f32 v10, v10, v12\nv_add_f32 v11, v11, v13")
    e.I(f"""
v_lshlrev_b32 v9, 7, v9
s_lshl_b32 s67, s29, 1
s_add_u32 s67, s67, s51
s_lshl_b32 s68, s67, 3
s_add_u32 s68, s68, {hx(OFF_ST)}
s_mov_b64 exec, 0xffff
buffer_store_dwordx2 v[10:11], v9, s[24:27], s68 offen sc1
s_mov_b64 exec, -1
""")
    S.stamp(3)
    get_epoch(e, f"L{name}_ep", 12, TAG, 69)
    e.I(f"""
s_lshl_b32 s68, s50, 6
s_lshl_b32 s67, s67, 2
s_add_u32 s68, s68, s67
s_add_u32 s68, s68, {hx(OFF_FC)}
v_mov_b32 v12, 0
v_mov_b32 v13, s{TAG}
s_mov_b64 exec, 1
buffer_store_dword v13, v12, s[24:27], s68 offen sc0 sc1
s_mov_b64 exec, -1
""")
    S.stamp(4)
    if diag:
        S.dump(30, 12, 16); e.I("s_mov_b64 exec, -1")
    S = Stamper(e, diag, 3)
    e.I("s_barrier")
    S.stamp(0)
    e.I(f"""
s_lshl_b32 s70, s31, 1
s_and_b32 s71, s32, 1
s_add_u32 s70, s70, s71
s_lshr_b32 s71, s32, 1
s_and_b32 s71, s71, 1
s_lshr_b32 s72, s32, 2
s_mul_i32 s73, s30, 7
s_cmp_eq_u32 s30, 7
s_cselect_b32 s74, 1, 0
s_sub_u32 s73, s73, s74
s_mul_i32 s74, s72, {5*54}
s_add_u32 s74, s74, s73
s_lshl_b32 s74, s74, 10
s_add_u32 s74, s74, {hx(OFF_WD)}
s_cmp_ge_u32 s30, 6
s_cselect_b32 s75, {hx(OOB)}, 0
""")
    def dload(n):
        s, ct = divmod(n, 5)
        pre = f"s_add_u32 s60, s74, {hx(ct*54*1024 + s*1024)}\n" + ("s_add_u32 s60, s60, s75\n" if s == 6 else "")
        return pre + f"buffer_load_dwordx4 {vr(WR+4*n,4)}, v2, s[24:27], s60 offen"
    HB = 41 * 1024; RS = 3 * HB
    e.I(f"s_cmp_eq_u32 s30, 7\ns_cbranch_scc1 L{name}_svc")
    stD = e.save()

    for n in wq_late[:1] + wq + wq_late[1:]: e.I(wload(n))
    e.I(f"""
v_and_b32 v5, 31, v1
v_lshrrev_b32 v6, 5, v1
v_add_u32 v3, 0x10000, v2
v_lshlrev_b32 v4, 2, v5
v_add_u32 v4, {hx(RS)}, v4
v_bfe_u32 v7, v1, 4, 1
v_mul_u32_u24 v7, {54*1024}, v7
v_lshl_add_u32 v7, v6, 8, v7
v_and_b32 v8, 15, v1
v_lshl_add_u32 v7, v8, 4, v7
s_mul_i32 s44, s56, {8*54*1024}
s_lshl_b32 s45, s58, 9
s_add_u32 s44, s44, s45
s_add_u32 s44, s44, {hx(OFF_HH)}
s_lshl_b32 s45, s56, 11
s_lshl_b32 s46, s58, 2
s_add_u32 s45, s45, s46
s_add_u32 s45, s45, {hx(OFF_FD)}
s_cmp_lt_u32 s58, 108
s_cselect_b32 s44, s44, {hx(OOB)}
s_cselect_b32 s45, s45, {hx(OOB)}
v_mov_b32 v12, 0
v_mov_b32 v13, s{TAG}
""")
    DA = 16; da = lambda rt: DA + (rt & 1) * 16
    HF = 48; NHF = 6
    seq = [(rt, ks) for rt in range(4) for ks in range(41)]
    bar_at = {0, 8, 24, 41, 82, 123}
    def rd(i):
        rt, ks = seq[i]; off = (rt % 3) * HB + ks * 1024
        return f"ds_read_b128 {vr(HF + (i % NHF)*4, 4)}, v{2 + (off >> 16)} offset:{off & 0xffff}"
    def mf(i):
        rt, ks = seq[i]
        c = "0" if ks == 0 else vr(da(rt), 16)
        return f"v_mfma_f32_32x32x16_bf16 {vr(da(rt),16)}, {vr(WR+4*ks,4)}, {vr(HF + (i % NHF)*4, 4)}, {c}"
    def epi(rt):
        a = da(rt); o = 72; out = [f"ds_read_b32 v10, v4 offset:{rt*128}", f"v_mul_f32 v11, {hx(f2u(-1.4426950408889634))}, v10"]
        for k in range(8): out.append(f"v_mul_f32 v{a+k}, v11, v{a+k}")
        for k in range(8): out += [f"v_exp_f32 v{a+k}, v{a+k}", f"v_mul_f32 v{a+8+k}, v10, v{a+8+k}"]
        for k in range(8): out.append(f"v_add_f32 v{a+k}, 1.0, v{a+k}")
        for k in range(8): out.append(f"v_rcp_f32 v{a+k}, v{a+k}")
        for k in range(8): out.append(f"v_mul_f32 v{a+8+k}, v{a+k}, v{a+8+k}")
        for k in range(4): out.append(f"v_cvt_pk_bf16_f32 v{o+k}, v{a+8+2*k}, v{a+9+2*k}")
        out.append((f"s_add_u32 s46, s44, {hx(rt*2*54*1024)}\nbuffer_store_dwordx4 {vr(o,4)}, v7, s[24:27], s46 offen sc1", ("hh", rt)))
        return out
    def flag(rt):
        e.wait_tag(("hh", rt))
        e.I(f"s_mov_b64 exec, 1\nbuffer_store_dword v13, v12, s[24:27], s45 offen offset:{rt*512} sc0 sc1\ns_mov_b64 exec, -1")
    LOOK = 4; N = len(seq); fill = []
    for i in range(-LOOK, N):
        j = i + LOOK
        if j < N:
            if j in bar_at:
                e.I("s_barrier")
                if j == 0: S.stamp(1)
                if j == 41: S.stamp(2)
                if j == 123: S.stamp(3)
            e.I(rd(j))
        if i >= 0:
            e.I(mf(i))
            rt, ks = seq[i]
            if ks == 1 and rt > 0: fill += epi(rt - 1)
            if ks == 38 and rt > 0: flag(rt - 1)
            if rt == 3 and 1 <= ks <= 35: e.I(dload(ks - 1))
            for _ in range(3):
                if fill:
                    x = fill.pop(0)
                    if isinstance(x, tuple): e.I(x[0], tag=x[1])
                    else: e.I(x)
    assert not fill
    for x in epi(3):
        if isinstance(x, tuple): e.I(x[0], tag=x[1])
        else: e.I(x)
    S.stamp(4)
    flag(3)
    e.wait_vm(0)
    e.I(f"s_branch L{name}_E")
    stE = e.save()

    e.restore(stD)
    e.label(f"L{name}_svc")
    e.I(f"""
v_lshlrev_b32 v3, 2, v1
v_and_b32 v5, 31, v1
v_lshrrev_b32 v6, 5, v1
v_lshlrev_b32 v7, 7, v5
v_lshl_add_u32 v7, v6, 6, v7
v_lshlrev_b32 v4, 2, v5
v_add_u32 v4, {hx(RS)}, v4
v_add_u32 v8, 0x10000, v2
s_lshl_b32 s44, s56, 9
s_add_u32 s44, s44, {hx(OFF_FC)}
s_mul_i32 s45, s56, {4*40960}
s_add_u32 s45, s45, {hx(OFF_H)}
s_lshl_b32 s46, s56, 14
s_add_u32 s46, s46, {hx(OFF_ST)}
s_mov_b32 s47, {hx(f2u(1.0/640))}
""")
    def hdma(rt, k0, k1):
        for ks in range(k0, k1):
            if ks % 4 == 0 or ks == k0:
                b = ks // 4 * 4
                e.I(f"s_mov_b32 m0, {hx((rt % 3)*HB + b*1024)}\ns_add_u32 s48, s45, {hx(rt*40960 + b*1024)}")
            e.I(f"buffer_load_dwordx4 v2, s[24:27], s48 offen offset:{(ks%4)*1024} sc1 lds", tag=("h", rt, ks))
    def stload(rt):
        e.I(f"s_add_u32 s49, s46, {hx(rt*4096)}")
        for k in range(4): e.I(f"buffer_load_dwordx4 {vr(16+4*k,4)}, v7, s[24:27], s49 offen offset:{k*16} sc1")
    def stcalc(rt):
        for k in (8, 10, 12, 14): e.I(f"v_pk_add_f32 {vr(16+k-8,2)}, {vr(16+k-8,2)}, {vr(16+k,2)}")
        e.I("v_pk_add_f32 v[16:17], v[16:17], v[20:21]\nv_pk_add_f32 v[18:19], v[18:19], v[22:23]\nv_pk_add_f32 v[16:17], v[16:17], v[18:19]")
        off = (rt % 3)*HB + 40*1024
        e.I(f"""
v_mov_b32 v18, v16
v_mov_b32 v19, v17
v_permlane32_swap_b32 v16, v18
v_permlane32_swap_b32 v17, v19
v_add_f32 v16, v16, v18
v_add_f32 v17, v17, v19
v_mul_f32 v16, s47, v16
v_mul_f32 v17, s47, v17
v_fma_f32 v17, -v16, v16, v17
v_max_f32 v17, 0, v17
v_add_f32 v17, {hx(f2u(EPS))}, v17
v_rsq_f32 v17, v17
v_cvt_pk_bf16_f32 v20, -v16, -v16
v_mov_b32 v21, v20
v_mov_b32 v22, v20
v_mov_b32 v23, v20
ds_write_b128 v{8 if off >> 16 else 2}, v[20:23] offset:{off & 0xffff}
ds_write_b32 v4, v17 offset:{rt*128}
""")
    def pollC(n, rt0):
        e.I(f"s_add_u32 s50, s44, {rt0*128}")
        poll(e, f"L{name}_pc{n}", 3, "s50", 9, "-1", TAG, 69)
    pollC(0, 0)
    S.stamp(1)
    hdma(0, 0, 8); stload(0); hdma(0, 8, 40)
    e.wait_tag(("h", 0, 7)); e.I("s_barrier")
    stcalc(0)
    stload(1)
    hdma(1, 0, 14)
    e.wait_tag(("h", 0, 23)); e.I("s_barrier")
    e.wait_tag(("h", 0, 39)); e.wait_lg(0); e.I("s_barrier")
    hdma(1, 14, 40)
    stcalc(1)
    pollC(1, 2)
    stload(2); hdma(2, 0, 40)
    S.stamp(2)
    e.wait_lg(0); e.I("s_barrier")
    stcalc(2)
    for n in range(0, 18): e.I(dload(n))
    e.wait_tag(("h", 2, 39)); e.wait_lg(0); e.I("s_barrier")
    stload(3); hdma(3, 0, 40)
    stcalc(3)
    for n in range(18, 35): e.I(dload(n))
    e.wait_tag(("h", 3, 39)); e.wait_lg(0); S.stamp(3); e.I("s_barrier"); S.stamp(4)
    e.wait_vm(0)
    e.merge(stE)

    e.label(f"L{name}_E")
    S.stamp(5)
    e.I(f"""
v_and_b32 v7, 15, v1
v_lshrrev_b32 v8, 4, v1
v_lshlrev_b32 v3, 2, v7
v_lshl_add_u32 v3, v8, 9, v3
s_lshl_b32 s44, s70, 11
s_lshl_b32 s45, s73, 3
s_add_u32 s44, s44, s45
s_add_u32 s44, s44, {hx(OFF_FD)}
s_mov_b32 s46, 0x3fff
s_cmp_ge_u32 s30, 6
s_cselect_b32 s46, 0xfff, s46
s_mov_b32 s47, 0
s_lshl_b32 s48, s46, 16
s_or_b32 s48, s48, s46
s_mov_b32 s49, s46
s_mov_b32 s50, 0
s_lshl_b32 s51, s46, 16
s_lshl_b32 s52, s70, 3
s_add_u32 s52, s52, s71
s_mul_i32 s53, s52, {54*1024}
s_lshl_b32 s54, s73, 10
s_add_u32 s53, s53, s54
s_add_u32 s53, s53, {hx(OFF_HH)}
s_lshl_b32 s55, s30, 10
v_add_u32 v4, s55, v2
v_add_u32 v11, 40960, v4
v_mul_u32_u24 v5, 1280, v7
v_lshl_add_u32 v5, v8, 3, v5
v_lshlrev_b32 v6, 4, v7
v_lshrrev_b32 v10, 1, v8
v_lshl_add_u32 v6, v10, 9, v6
v_and_b32 v10, 1, v8
v_lshl_add_u32 v6, v10, 3, v6
s_mov_b32 s63, 0xffff0000
""")
    AF = 16; af = lambda tt, s: AF + (tt & 1) * 28 + s * 4
    EA = 72
    RT = 232
    def aload(tt):
        for s in range(7):
            if s % 4 == 0: e.I(f"s_add_u32 s56, s53, {hx(tt*2*54*1024 + s*1024)}")
            if s == 6: e.I("s_add_u32 s56, s56, s75")
            e.I(f"buffer_load_dwordx4 {vr(af(tt,s),4)}, v2, s[24:27], s56 offen offset:{(s%4)*1024} sc1")
    poll(e, f"L{name}_pe0", 3, "s44", 9, "s[48:49]", TAG, 69)
    aload(0); aload(1)
    e.I("s_barrier")
    def owner_setup(tt):
        e.I(f"""
s_sub_u32 s57, s30, {5*tt}
s_and_b32 s57, s57, 7
s_lshl_b32 s58, s70, 2
s_add_u32 s58, s58, {tt}
s_mul_i32 s59, s58, 40
s_mul_i32 s60, s72, 5
s_add_u32 s60, s60, s57
s_add_u32 s59, s59, s60
s_lshl_b32 s59, s59, 10
s_lshl_b32 s61, s71, 8
s_add_u32 s59, s59, s61
s_add_u32 s59, s59, {hx(OFF_H)}
s_lshl_b32 s58, s58, 1
s_add_u32 s58, s58, s71
s_mul_i32 s58, s58, 20480
s_lshl_b32 s60, s60, 5
s_add_u32 s58, s58, s60
s_cmp_lt_u32 s57, 5
s_cselect_b32 s59, s59, {hx(OOB)}
s_cselect_b32 s{64+tt}, s58, {hx(OOB)}
s_lshl_b32 s57, s57, 13
s_add_u32 s{36+tt}, s57, {(tt & 1)*40960}
buffer_load_dwordx2 {vr(12+2*(tt&1),2)}, v6, s[24:27], s59 offen sc1
""")
    def reduce(tt):
        lab = f"L{name}_nr{tt}"
        e.wait_vm(len(e.st.vm) - 1 - max(k for k, x in enumerate(e.st.vm) if f"v{12+2*(tt&1)}" in x[0])) if any(f"v{12+2*(tt&1)}" in x[0] for x in e.st.vm) else None
        e.I(f"s_cmp_eq_u32 s{64+tt}, {hx(OOB)}\ns_cbranch_scc1 {lab}")
        st = e.save()
        r = 12 + 2*(tt & 1)
        e.I(f"v_add_u32 v9, s{36+tt}, v2")
        for h in range(2):
            for k in range(4): e.I(f"ds_read_b128 {vr(RT+4*k,4)}, v9 offset:{(4*h+k)*1024}")
            if h == 0:
                o = RT + 16
                e.I(f"v_lshlrev_b32 v{o}, 16, v{r}\nv_and_b32 v{o+1}, s63, v{r}\nv_lshlrev_b32 v{o+2}, 16, v{r+1}\nv_and_b32 v{o+3}, s63, v{r+1}")
            for k in range(4):
                for q in range(4): e.I(f"v_add_f32 v{RT+16+q}, v{RT+16+q}, v{RT+4*k+q}")
        e.I(f"v_cvt_pk_bf16_f32 v{RT+20}, v{RT+16}, v{RT+17}\nv_cvt_pk_bf16_f32 v{RT+21}, v{RT+18}, v{RT+19}")
        e.merge(st)
        e.label(lab)
        e.I(f"buffer_store_dwordx2 {vr(RT+20,2)}, v5, s[20:23], s{64+tt} offen")
    for tt in range(4):
        owner_setup(tt)
        for s in range(7):
            for ct in range(5):
                c = "0" if s == 0 else vr(EA+4*ct, 4)
                e.I(f"v_mfma_f32_16x16x32_bf16 {vr(EA+4*ct,4)}, {vr(WR+4*(s*5+ct),4)}, {vr(af(tt,s),4)}, {c}")
            if s == 1 and tt > 0: reduce(tt - 1)
        if tt == 0: aload(2)
        if tt == 1:
            poll(e, f"L{name}_pe1", 3, "s44", 9, "s[50:51]", TAG, 69)
            aload(3)
        for ct in range(5): e.I(f"ds_write_b128 v{11 if tt&1 else 4}, {vr(EA+4*ct,4)} offset:{ct*8192}")
        e.wait_lg(0)
        e.I("s_barrier")
    S.stamp(6)
    reduce(3)
    if diag:
        e.wait_vm(0); S.stamp(7); S.dump(30, 12, 16)
    e.label(f"L{name}_end")
    e.I("s_endpgm")
    e.label(f"L{name}_endcode")
    return dict(name=name, grid=256, block=512, lds=163840, kd=kd(name, 256))
```

```python
import sys
from build import build
from fused import gen_all
stop = sys.argv[1] if len(sys.argv) > 1 and sys.argv[1] != "-" else None
build([lambda e: gen_all(e, diag=True, stop=stop)], "all_diag.s")
build([lambda e: gen_all(e, diag=2, stop=stop)], "all_cyc.s")
build([lambda e: gen_all(e, diag=False, stop=stop)], "all.s")


for nm, opt in (("x1", dict(astamp=1)),):
    build([lambda e: gen_all(e, diag=True, stop="b", opt=opt)], f"all_{nm}.s")
```
